```python
import torch

def _softmax(x, axis=-1):
    return torch.softmax(x, dim=axis)
def _gelu(x):
    return torch.nn.functional.gelu(x, approximate="tanh")
def _silu(x):
    return torch.nn.functional.silu(x)
def _sigmoid(x):
    return torch.sigmoid(x)
def _layernorm(x, axis=-1, eps=1e-5):
    m = x.mean(dim=axis, keepdim=True)
    v = x.var(dim=axis, keepdim=True, unbiased=False)
    return (x - m) / torch.sqrt(v + eps)
def _scatter_add(tgt, idx, src, axis=0):
    return tgt.clone().index_add_(axis, idx, src)
def _segment_sum(src, seg, n):
    out = torch.zeros((n,) + src.shape[1:], dtype=src.dtype)
    return out.index_add_(0, seg, src)
def _pad(x, pw):
    flat = tuple(v for pair in reversed(pw) for v in pair)
    return torch.nn.functional.pad(x, flat)

kernel_name = 'standalone__seq2seq_rnn_t_joint__speech'

def setup_inputs():

    _w = (lambda a: (lambda t: t.to(torch.bfloat16) if t.is_floating_point() else t)(torch.as_tensor(a)))
    B, T, D, K = 2, 1000, 512, 3
    U = 8
    sc = (1.0 / (K * D)) ** 0.5
    sd = (1.0 / D) ** 0.5
    return {
        "x": _w((lambda *s: torch.randn(*s, dtype=torch.bfloat16) * 0.4)(B, T, D) * 0.5),
        "w1": _w((lambda *s: torch.randn(*s, dtype=torch.bfloat16) * 3.2)(K, D, D) * sc),
        "w2": _w((lambda *s: torch.randn(*s, dtype=torch.bfloat16) * 3.2)(K, D, D) * sc),
        "g": _w((lambda *s: torch.randn(*s, dtype=torch.bfloat16) * 3.2)(B, U, D) * 0.5),
        "w_f": _w((lambda *s: torch.randn(*s, dtype=torch.bfloat16) * 3.2)(D, D) * sd),
        "w_g": _w((lambda *s: torch.randn(*s, dtype=torch.bfloat16) * 3.2)(D, D) * sd),
        "w_o": _w((lambda *s: torch.randn(*s, dtype=torch.bfloat16) * 3.2)(D, D) * sd),
    }

def reference(x, w1, w2, g, w_f, w_g, w_o):
    B, T, D = x.shape
    K = w1.shape[0]
    pad = K // 2
    xp = _pad(x, ((0,0),(pad,pad),(0,0)))
    h = torch.zeros_like(x)
    for i in range(K):
        h = h + torch.einsum("btc,cd->btd", xp[:, i:i+T, :], w1[i])
    h = _gelu(h)[:, ::2, :]
    T1 = h.shape[1]
    hp = _pad(h, ((0,0),(pad,pad),(0,0)))
    f = torch.zeros_like(h)
    for i in range(K):
        f = f + torch.einsum("btc,cd->btd", hp[:, i:i+T1, :], w2[i])
    f = _gelu(f)[:, ::2, :]
    fe = torch.einsum("btd,de->bte", f, w_f)
    ge = torch.einsum("bud,de->bue", g, w_g)
    j = torch.tanh(fe[:, :, None, :] + ge[:, None, :, :])
    return torch.einsum("btud,dv->btuv", j, w_o)
```

```python
HEADER_COMMENT = """; Kernarg layout for this problem (80 bytes, ptrs only, base s[0:1]):
"""

KA = dict(x=0, w1=8, w2=16, g=24, w_f=32, w_g=40, w_o=48, out=56, dbg=64, ws=72)


class Asm:
    def __init__(self):
        self.lines = []
        self._lab = 0

    def __call__(self, s=""):
        for ln in s.split("\n"):
            ln = ln.rstrip()
            if ln.strip():
                self.lines.append(ln if ln.strip().endswith(":") else "    " + ln.strip())

    def label(self, name):
        self.lines.append(name + ":")

    def newlabel(self, stem="L"):
        self._lab += 1
        return f"{stem}_{self._lab}"

    def nop(self, n):
        while n > 0:
            k = min(n, 16)
            self(f"s_nop {k-1}")
            n -= k

    def text(self):
        return "\n".join(self.lines) + "\n"


def kernel_begin(a, name):
    a.lines.append(f".globl {name}")
    a.lines.append(".p2align 8")
    a.lines.append(f".type {name},@function")
    a.lines.append(f"{name}:")


def descriptor(name, vgpr, sgpr, accum):
    return f""".amdhsa_kernel {name}
  .amdhsa_next_free_vgpr {vgpr}
  .amdhsa_next_free_sgpr {sgpr}
  .amdhsa_accum_offset {accum}
  .amdhsa_group_segment_fixed_size 0
  .amdhsa_kernarg_size 80
  .amdhsa_user_sgpr_count 2
  .amdhsa_user_sgpr_kernarg_segment_ptr 1
  .amdhsa_system_sgpr_workgroup_id_x 1
  .amdhsa_float_denorm_mode_32 3
.end_amdhsa_kernel
"""


def assemble_file(launches, body, descs):
    out = HEADER_COMMENT
    for (k, g, b, lds) in launches:
        out += f"; @launch kernel={k} grid=({g},1,1) block=({b},1,1) lds={lds}\n"
    out += '.amdgcn_target "amdgcn-amd-amdhsa--gfx950"\n.text\n'
    out += body
    out += '.section .rodata,"a"\n'
    for d in descs:
        out += ".p2align 6\n" + d
    return out


def vr(base, n=1):
    return f"v{base}" if n == 1 else f"v[{base}:{base+n-1}]"


def ar(base, n=1):
    return f"a{base}" if n == 1 else f"a[{base}:{base+n-1}]"


def sr(base, n=1):
    return f"s{base}" if n == 1 else f"s[{base}:{base+n-1}]"


def srd(a, d, lo, hi, nbytes):
    a(f"s_mov_b32 s{d}, {lo}")
    a(f"s_and_b32 s{d+1}, {hi}, 0xffff")
    a(f"s_mov_b32 s{d+2}, {nbytes}")
    a(f"s_mov_b32 s{d+3}, 0x00020000")


import struct


def f32(x):
    return "0x%08x" % struct.unpack("<I", struct.pack("<f", x))[0]
```

```python
import sys
from asmlib import *

H_OFF = 0x000000
F_OFF = 0x100000
J_OFF = 0x200000

GC1 = -2.0 * 1.4426950408889634 * 0.7978845608028654
GC2 = GC1 * 0.044715
TC = 2.0 * 1.4426950408889634


def lane_setup(a):
    a("v_and_b32 v1, 31, v0")
    a("v_lshrrev_b32 v2, 5, v0")
    a("v_and_b32 v5, 15, v0")
    a("v_lshrrev_b32 v6, 2, v5")
    a("v_lshl_add_u32 v6, v2, 3, v6")
    a("v_lshlrev_b32 v6, 6, v6")
    a("v_bfe_u32 v7, v0, 4, 1")
    a("v_lshl_add_u32 v6, v7, 5, v6")
    a("v_and_b32 v7, 3, v0")
    a("v_lshl_add_u32 v3, v7, 3, v6")
    a("v_lshrrev_b32 v4, 2, v0")
    a("v_lshlrev_b32 v4, 10, v4")
    a("v_lshl_add_u32 v4, v7, 4, v4")


def gemm(a, taps, stride, pad, sA, sW, s_t0, s_n0, acc):
    for r in range(16):
        a(f"v_accvgpr_write_b32 a{acc+r}, 0")
    a(f"v_add_u32 v8, {s_n0}, v4")
    for tap in range(taps):
        a(f"v_add_u32 v9, {s_t0}, v1")
        if stride == 2:
            a("v_lshlrev_b32 v9, 1, v9")
        if tap - pad != 0:
            a(f"v_add_u32 v9, {tap-pad}, v9")
        a("v_cmp_gt_i32 vcc, 0, v9")
        a("v_lshlrev_b32 v9, 10, v9")
        a("v_lshl_add_u32 v9, v2, 4, v9")
        a("v_mov_b32 v10, 0x40000000")
        a("v_cndmask_b32 v9, v9, v10, vcc")
        a("s_mov_b32 s27, 0")
        a(f"s_mov_b32 s28, {tap*524288}")
        L = a.newlabel("Lk")
        a.label(L)
        for i in range(4):
            a(f"s_mov_b32 m0, {i*1024}")
            a(f"s_add_u32 s29, s28, {i*16384}")
            a(f"buffer_load_dwordx4 v8, s[{sW}:{sW+3}], s29 offen lds")
        for s in range(4):
            a(f"buffer_load_dwordx4 v[{16+4*s}:{19+4*s}], v9, s[{sA}:{sA+3}], s27 offen offset:{32*s}")
        a("s_waitcnt vmcnt(0)")
        for s in range(4):
            a(f"ds_read_b64_tr_b16 v[{32+4*s}:{33+4*s}], v3 offset:{s*1024}")
            a(f"ds_read_b64_tr_b16 v[{34+4*s}:{35+4*s}], v3 offset:{s*1024+256}")
        a("s_waitcnt lgkmcnt(0)")
        for s in range(4):
            a(f"v_mfma_f32_32x32x16_bf16 a[{acc}:{acc+15}], v[{32+4*s}:{35+4*s}], v[{16+4*s}:{19+4*s}], a[{acc}:{acc+15}]")
        a("s_add_u32 s27, s27, 128")
        a("s_add_u32 s28, s28, 65536")
        a("s_cmp_lt_u32 s27, 1024")
        a(f"s_cbranch_scc1 {L}")
    a.nop(16)


def gelu(a, x, t1, t2):
    a(f"v_mul_f32 v{t1}, v{x}, v{x}")
    a(f"v_mov_b32 v{t2}, s40")
    a(f"v_fma_f32 v{t1}, v{t1}, s41, v{t2}")
    a(f"v_mul_f32 v{t1}, v{t1}, v{x}")
    a(f"v_exp_f32 v{t1}, v{t1}")
    a("s_nop 0")
    a(f"v_add_f32 v{t1}, 1.0, v{t1}")
    a(f"v_rcp_f32 v{t1}, v{t1}")
    a("s_nop 0")
    a(f"v_mul_f32 v{x}, v{x}, v{t1}")


def store_tile(a, src, sO, vrow):
    for q in range(4):
        a(f"v_cvt_pk_bf16_f32 v{60}, v{src+4*q}, v{src+4*q+1}")
        a(f"v_cvt_pk_bf16_f32 v{61}, v{src+4*q+2}, v{src+4*q+3}")
        a(f"buffer_store_dwordx2 v[60:61], v{vrow}, s[{sO}:{sO+3}], 0 offen offset:{16*q}")
        a("s_nop 1")


def add_ptr(a, d, lo, hi, off_sgpr=None, off_imm=0):
    a(f"s_add_u32 s{d}, s{lo}, {off_imm if off_sgpr is None else off_sgpr}")
    a(f"s_addc_u32 s{d+1}, s{hi}, 0")


def conv_kernel(a, name, which):
    kernel_begin(a, name)
    if which == 1:
        nwg, Tin, Tout, tshift, wname = 512, 1000, 500, 4, "w1"
    else:
        nwg, Tin, Tout, tshift, wname = 256, 500, 250, 3, "w2"
    done = a.newlabel("Ldone")
    a(f"s_cmp_ge_u32 s2, {nwg}")
    a(f"s_cbranch_scc1 {done}")
    a(f"s_load_dwordx2 s[4:5], s[0:1], {KA['x']}")
    a(f"s_load_dwordx2 s[6:7], s[0:1], {KA[wname]}")
    a(f"s_load_dwordx2 s[8:9], s[0:1], {KA['ws']}")
    a("s_and_b32 s26, s2, 15")
    a("s_lshr_b32 s25, s2, 4")
    a(f"s_and_b32 s25, s25, {(1<<tshift)-1}")
    a(f"s_lshr_b32 s24, s2, {4+tshift}")
    lane_setup(a)
    a("s_waitcnt lgkmcnt(0)")
    a(f"s_mul_i32 s30, s24, {Tin*1024}")
    if which == 1:
        add_ptr(a, 10, 4, 5, "s30")
        a(f"s_mul_i32 s31, s24, {Tout*1024}")
        a(f"s_add_u32 s31, s31, {H_OFF}")
    else:
        a(f"s_add_u32 s30, s30, {H_OFF}")
        add_ptr(a, 10, 8, 9, "s30")
        a(f"s_mul_i32 s31, s24, {Tout*1024}")
        a(f"s_add_u32 s31, s31, {F_OFF}")
    srd(a, 12, "s10", "s11", Tin*1024)
    srd(a, 16, "s6", "s7", 3*524288)
    add_ptr(a, 10, 8, 9, "s31")
    srd(a, 20, "s10", "s11", Tout*1024)
    a("s_lshl_b32 s32, s25, 5")
    a("s_lshl_b32 s33, s26, 6")
    gemm(a, 3, 2, 1, 12, 16, "s32", "s33", 0)
    a(f"s_mov_b32 s40, {f32(GC1)}")
    a(f"s_mov_b32 s41, {f32(GC2)}")
    for r in range(16):
        a(f"v_accvgpr_read_b32 v{64+r}, a{r}")
    for r in range(16):
        gelu(a, 64+r, 11, 12)
    a("v_add_u32 v13, s32, v1")
    a("v_lshlrev_b32 v13, 10, v13")
    a("v_lshl_add_u32 v13, v2, 3, v13")
    a("v_add_u32 v13, s33, v13")
    store_tile(a, 64, 20, 13)
    a.label(done)
    a("s_endpgm")


def k3_kernel(a, name):
    kernel_begin(a, name)
    done = a.newlabel("Ldone")
    a("s_cmp_ge_u32 s2, 256")
    a(f"s_cbranch_scc1 {done}")
    a(f"s_load_dwordx2 s[4:5], s[0:1], {KA['g']}")
    a(f"s_load_dwordx2 s[6:7], s[0:1], {KA['w_f']}")
    a(f"s_load_dwordx2 s[8:9], s[0:1], {KA['ws']}")
    a(f"s_load_dwordx2 s[34:35], s[0:1], {KA['w_g']}")
    a("s_and_b32 s26, s2, 15")
    a("s_lshr_b32 s25, s2, 4")
    a("s_and_b32 s25, s25, 7")
    a("s_lshr_b32 s24, s2, 7")
    lane_setup(a)
    a("s_waitcnt lgkmcnt(0)")
    a("s_lshl_b32 s32, s25, 5")
    a("s_lshl_b32 s33, s26, 6")
    a("s_mul_i32 s30, s24, 8192")
    add_ptr(a, 10, 4, 5, "s30")
    srd(a, 12, "s10", "s11", 8192)
    srd(a, 16, "s34", "s35", 524288)
    a("s_mov_b32 s36, 0")
    gemm(a, 1, 1, 0, 12, 16, "s36", "s33", 16)
    a(f"s_mul_i32 s30, s24, {250*1024}")
    a(f"s_add_u32 s30, s30, {F_OFF}")
    add_ptr(a, 10, 8, 9, "s30")
    srd(a, 12, "s10", "s11", 250*1024)
    srd(a, 16, "s6", "s7", 524288)
    gemm(a, 1, 1, 0, 12, 16, "s32", "s33", 0)
    a(f"s_mul_i32 s30, s24, {250*8*1024}")
    a(f"s_add_u32 s30, s30, {J_OFF}")
    add_ptr(a, 10, 8, 9, "s30")
    srd(a, 20, "s10", "s11", 250*8*1024)
    a(f"s_mov_b32 s40, {f32(TC)}")
    for r in range(16):
        a(f"v_accvgpr_read_b32 v{80+r}, a{16+r}")
        a(f"v_accvgpr_read_b32 v{64+r}, a{r}")
    for r in range(16):
        a(f"v_mul_f32 v{80+r}, s40, v{80+r}")
        a(f"v_mul_f32 v{64+r}, s40, v{64+r}")
    a("v_lshlrev_b32 v11, 7, v1")
    a("v_lshl_add_u32 v11, v2, 4, v11")
    a("v_add_u32 v11, 8192, v11")
    for q in range(4):
        a(f"ds_write_b128 v11, v[{80+4*q}:{83+4*q}] offset:{32*q}")
    a("s_waitcnt lgkmcnt(0)")
    a("v_lshlrev_b32 v11, 4, v2")
    a("v_add_u32 v11, 8192, v11")
    a("v_add_u32 v13, s32, v1")
    a("v_lshlrev_b32 v13, 13, v13")
    a("v_lshl_add_u32 v13, v2, 3, v13")
    a("v_add_u32 v13, s33, v13")
    for u in range(8):
        for q in range(4):
            a(f"ds_read_b128 v[{80+4*q}:{83+4*q}], v11 offset:{u*128+32*q}")
        a("s_waitcnt lgkmcnt(0)")
        for r in range(16):
            x = 80+r
            a(f"v_add_f32 v{x}, v{x}, v{64+r}")
            a(f"v_exp_f32 v{x}, v{x}")
            a("s_nop 0")
            a(f"v_add_f32 v{x}, 1.0, v{x}")
            a(f"v_rcp_f32 v{x}, v{x}")
            a("s_nop 0")
            a(f"v_fma_f32 v{x}, v{x}, -2.0, 1.0")
        store_tile(a, 80, 20, 13)
        a("v_add_u32 v13, 1024, v13")
    a.label(done)
    a("s_endpgm")


def k4_kernel(a, name):
    kernel_begin(a, name)
    done = a.newlabel("Ldone")
    a("s_cmp_ge_u32 s2, 2000")
    a(f"s_cbranch_scc1 {done}")
    a(f"s_load_dwordx2 s[6:7], s[0:1], {KA['w_o']}")
    a(f"s_load_dwordx2 s[8:9], s[0:1], {KA['ws']}")
    a(f"s_load_dwordx2 s[34:35], s[0:1], {KA['out']}")
    a("s_and_b32 s26, s2, 15")
    a("s_lshr_b32 s25, s2, 4")
    lane_setup(a)
    a("s_waitcnt lgkmcnt(0)")
    a("s_lshl_b32 s32, s25, 5")
    a("s_lshl_b32 s33, s26, 6")
    add_ptr(a, 10, 8, 9, None, J_OFF)
    srd(a, 12, "s10", "s11", 4000*1024)
    srd(a, 16, "s6", "s7", 524288)
    srd(a, 20, "s34", "s35", 4000*1024)
    gemm(a, 1, 1, 0, 12, 16, "s32", "s33", 0)
    for r in range(16):
        a(f"v_accvgpr_read_b32 v{64+r}, a{r}")
    a("v_add_u32 v13, s32, v1")
    a("v_lshlrev_b32 v13, 10, v13")
    a("v_lshl_add_u32 v13, v2, 3, v13")
    a("v_add_u32 v13, s33, v13")
    store_tile(a, 64, 20, 13)
    a.label(done)
    a("s_endpgm")


def empty_kernel(a, name):
    kernel_begin(a, name)
    a("s_endpgm")


def build(n_empty=0, empty_grid=256):
    a = Asm()
    conv_kernel(a, "k1_kernel", 1)
    conv_kernel(a, "k2_kernel", 2)
    k3_kernel(a, "k3_kernel")
    k4_kernel(a, "k4_kernel")
    launches = [("k1_kernel", 512, 64, 16384), ("k2_kernel", 256, 64, 16384),
                ("k3_kernel", 256, 64, 16384), ("k4_kernel", 2000, 64, 16384)]
    names = ["k1_kernel", "k2_kernel", "k3_kernel", "k4_kernel"]
    if n_empty:
        empty_kernel(a, "e_kernel")
        names.append("e_kernel")
        launches += [("e_kernel", empty_grid, 64, 0)] * n_empty
    descs = [descriptor(n, 128 + 32, 48, 128) for n in names]
    return assemble_file(launches, a.text(), descs)


if __name__ == "__main__":
    out = sys.argv[1]
    n_empty = int(sys.argv[2]) if len(sys.argv) > 2 else 0
    open(out, "w").write(build(n_empty))
```

```python
import sys
import gen_base as gb
from asmlib import *

def probe(a, name, arg, off, stride, n):
    kernel_begin(a, name)
    a("s_cmp_ge_u32 s2, 1")
    a("s_cbranch_scc1 Lp_done")
    a(f"s_load_dwordx2 s[4:5], s[0:1], {KA[arg]}")
    a("s_waitcnt lgkmcnt(0)")
    a(f"s_add_u32 s4, s4, {off}")
    a("s_addc_u32 s5, s5, 0")
    srd(a, 8, "s4", "s5", stride * n + 4096)
    a("v_mov_b32 v1, 0")
    a(f"s_mov_b32 s12, {n}")
    a.label("Lp_loop")
    a("buffer_load_dword v2, v1, s[8:11], 0 offen")
    a("s_waitcnt vmcnt(0)")
    a("v_and_b32 v2, 0, v2")
    a(f"v_add_u32 v1, {stride}, v1")
    a("v_add_u32 v1, v2, v1")
    a("s_sub_u32 s12, s12, 1")
    a("s_cmp_lg_u32 s12, 0")
    a("s_cbranch_scc1 Lp_loop")
    a.label("Lp_done")
    a("s_endpgm")

def build(arg, off, stride, n):
    a = Asm()
    probe(a, "p_kernel", arg, off, stride, n)
    gb.conv_kernel(a, "k1_kernel", 1)
    gb.conv_kernel(a, "k2_kernel", 2)
    gb.k3_kernel(a, "k3_kernel")
    gb.k4_kernel(a, "k4_kernel")
    launches = [("p_kernel", 1, 64, 0), ("k1_kernel", 512, 64, 16384), ("k2_kernel", 256, 64, 16384),
                ("k3_kernel", 256, 64, 16384), ("k4_kernel", 2000, 64, 16384)]
    names = ["p_kernel", "k1_kernel", "k2_kernel", "k3_kernel", "k4_kernel"]
    descs = [descriptor(n_, 128 + 32, 48, 128) for n_ in names]
    return assemble_file(launches, a.text(), descs)

cfg = {
    "p_none": ("x", 0, 0, 1),
    "p_x": ("x", 0, 16000, 128),
    "p_w1": ("w1", 0, 12288, 128),
    "p_out": ("out", 0, 32000, 128),
    "p_ws": ("ws", 64 << 20, 32768, 128),
    "p_xsame": ("x", 0, 128, 128),
}
for k, v in cfg.items():
    open(f"../exp/{k}.s", "w").write(build(*v))
```

```python
import re

_reg = re.compile(r"^(v|a|s)(\d+)$")
_rng = re.compile(r"^(v|a|s)\[(\d+):(\d+)\]$")

TRANS = ("v_exp_f32", "v_log_f32", "v_rcp_f32", "v_rsq_f32", "v_sqrt_f32", "v_sin_f32", "v_cos_f32")


def regs(op):
    op = op.strip()
    m = _reg.match(op)
    if m:
        return {(m.group(1), int(m.group(2)))}
    m = _rng.match(op)
    if m:
        return {(m.group(1), i) for i in range(int(m.group(2)), int(m.group(3)) + 1)}
    if op == "vcc":
        return {("s", "vcc")}
    if op == "m0":
        return {("s", "m0")}
    if op == "exec":
        return {("s", "exec")}
    return set()


class Ins:
    def __init__(self, line):
        self.line = line
        s = line.strip()
        self.is_label = s.endswith(":")
        self.mn = ""
        self.ops = []
        if self.is_label or not s or s.startswith(";") or s.startswith("."):
            self.kind = "none"
            self.defs = set(); self.uses = set()
            return
        s = s.split(";")[0].strip()
        parts = s.split(None, 1)
        self.mn = parts[0]
        rest = parts[1] if len(parts) > 1 else ""
        ops = [o.strip() for o in rest.split(",")] if rest else []
        if ops:
            last = ops[-1].split()
            self.mods = last[1:]
            ops[-1] = last[0] if last else ""
        else:
            self.mods = []
        self.ops = ops
        mn = self.mn
        R = [regs(o) for o in ops]
        allr = lambda xs: set().union(*xs) if xs else set()
        self.defs = set(); self.uses = set()
        self.srcC = set(); self.passes = 0
        if mn.startswith("v_mfma"):
            self.kind = "mfma"
            self.defs = R[0]
            self.uses = R[1] | R[2] | R[3]
            self.srcAB = R[1] | R[2]
            self.srcC = R[3]
            self.passes = 8 if "32x32x16" in mn else 4
        elif mn.startswith("v_"):
            self.kind = "valu"
            if mn.startswith("v_cmp"):
                self.defs = R[0]; self.uses = allr(R[1:])
            elif mn.startswith("v_swap") or mn.startswith("v_permlane"):
                self.defs = R[0] | R[1]; self.uses = R[0] | R[1]
            elif mn.startswith("v_writelane"):
                self.defs = R[0]; self.uses = allr(R)
            else:
                self.defs = R[0]; self.uses = allr(R[1:])
                if mn.startswith("v_fmac") or mn.startswith("v_dot2c"):
                    self.uses |= R[0]
            if "dpp" in mn or any(m.startswith(("row_", "quad_perm", "wave_")) for m in self.mods):
                self.dpp = True
                self.uses |= R[0]
        elif mn.startswith("ds_"):
            self.kind = "ds"
            if mn.startswith("ds_read"):
                self.defs = R[0]; self.uses = allr(R[1:])
            else:
                self.uses = allr(R)
        elif mn.startswith("buffer_"):
            self.kind = "vmem"
            lds = "lds" in self.mods
            if mn.startswith("buffer_load") and not lds:
                self.defs = R[0]; self.uses = allr(R[1:])
            elif lds:
                self.uses = allr(R) | {("s", "m0")}
                self.lds_dma = True
            else:
                self.uses = allr(R)
                self.store_data = R[0] if ("x4" in mn or "x3" in mn) else set()
        elif mn.startswith("s_"):
            self.kind = "salu"
            if mn in ("s_nop", "s_waitcnt", "s_barrier", "s_endpgm", "s_setprio", "s_branch") or mn.startswith("s_cbranch"):
                self.kind = "ctl"
            elif mn.startswith("s_cmp"):
                self.uses = allr(R)
            elif mn.startswith("s_load") or mn.startswith("s_mem") or mn.startswith("s_getpc"):
                self.defs = R[0]; self.uses = allr(R[1:])
                self.kind = "smem"
            else:
                self.defs = R[0]; self.uses = allr(R[1:])
        else:
            raise ValueError("unknown instruction: " + line)

    def states(self):
        if self.kind == "none":
            return 0
        if self.mn == "s_nop":
            return int(self.ops[0], 0) + 1
        return 1


def need(p, c):
    n = 0
    vreg = lambda S: {r for r in S if r[0] in "va"}
    sreg = lambda S: {r for r in S if r[0] == "s"}
    if p.kind == "valu":
        w = vreg(p.defs)
        if c.kind == "mfma" and w & c.uses:
            n = max(n, 2)
        if c.kind == "valu":
            if p.mn in TRANS and c.mn not in TRANS and w & c.uses:
                n = max(n, 1)
            if p.mn in TRANS and c.mn in TRANS and w & c.uses:
                n = max(n, 1)
            if c.mn.startswith(("v_readfirstlane", "v_readlane")) and w & c.uses:
                n = max(n, 1)
            if c.mn.startswith("v_permlane") and w & c.uses:
                n = max(n, 2)
            if getattr(c, "dpp", False) and w & c.uses:
                n = max(n, 2)
        ws = sreg(p.defs)
        if ws:
            if c.kind == "vmem" and ws & c.uses:
                n = max(n, 5)
            if c.kind == "valu" and ws & c.uses:
                n = max(n, 4 if c.mn.startswith(("v_readlane", "v_writelane")) else 2)
            if c.kind in ("salu", "smem") and ws & c.uses:
                n = max(n, 2)
            if c.kind == "ctl" and c.mn.startswith("s_cbranch_vcc") and ("s", "vcc") in ws:
                n = max(n, 1)
        if ("s", "exec") in p.defs and c.kind == "mfma":
            n = max(n, 4)
    if p.kind == "salu":
        if ("s", "m0") in p.defs and getattr(c, "lds_dma", False):
            n = max(n, 1)
        if ("s", "exec") in p.defs and c.kind == "mfma":
            n = max(n, 4)
        if ("s", "exec") in p.defs and getattr(c, "dpp", False):
            n = max(n, 5)
    if p.kind == "mfma":
        D = p.defs
        big = p.passes == 8
        if c.kind == "mfma":
            if D & c.srcC:
                if not (c.srcC == D and c.passes == p.passes):
                    n = max(n, 10 if big else 6)
            if D & c.srcAB:
                n = max(n, 12 if big else 8)
            if D & c.defs and not (c.srcC == D and c.passes == p.passes):
                n = max(n, 12 if big else 8)
        elif c.kind == "valu":
            if D & (c.uses | c.defs):
                n = max(n, 12 if big else 8)
            if p.srcC & c.defs:
                n = max(n, 7 if big else 3)
        elif c.kind in ("vmem", "ds"):
            if D & (c.uses | c.defs):
                n = max(n, 12 if big else 8)
            if p.srcC & c.defs:
                n = max(n, 7 if big else 3)
    if p.kind == "vmem" and getattr(p, "store_data", None):
        if p.store_data & c.defs:
            n = max(n, 2 if c.kind == "valu" else 1)
    return n


def fix(lines, window=24):
    out = []
    hist = []
    pos = 0
    added = 0
    for ln in lines:
        c = Ins(ln)
        if c.kind == "none":
            out.append(ln)
            continue
        req = 0
        for (p, ppos) in hist:
            d = pos - ppos - p.states()
            k = need(p, c)
            if k > d:
                req = max(req, k - d)
        if req:
            added += req
            k = req
            while k > 0:
                m = min(k, 16)
                out.append(f"    s_nop {m-1}")
                pos += m
                k -= m
        out.append(ln)
        hist.append((c, pos))
        pos += c.states()
        while hist and pos - hist[0][1] > window + 4:
            hist.pop(0)
    return out, added
```

```python
import sys, argparse
from asmlib import Asm, HEADER_COMMENT, descriptor, f32
import hazard

NAME = "standalone__seq2seq_rnn_t_joint__speech_kernel"

GC1 = -2.0 * 1.4426950408889634 * 0.7978845608028654
GC2 = GC1 * 0.044715
TC = 2.0 * 1.4426950408889634

H_OFF, P_OFF, G_OFF, FL_OFF = 0x000000, 0x100000, 0x500000, 0x520000
E_OFF, F1_OFF, F3_OFF = FL_OFF, FL_OFF + 0x400, FL_OFF + 0x800
WS_BYTES = 0x530000
STAMP_OFF = 0x8000000
OOB = 0x40000000
RING = 40960
SPIN = 1 << 15

SX, SW1, SW2, SWF, SWO, SWS, SOUT, SGG, SWG, SC = 4, 8, 12, 16, 20, 24, 28, 32, 36, 40
sW, sXCD, sIDX, sB, sMT1, sNT1, sDS, sMT2, sNH, sTT4, sLB = 44, 45, 46, 47, 48, 49, 50, 51, 52, 53, 54
sROT, sSPIN = 55, 56
sT0, sT1, sT2, sT3, sT4, sT5 = 57, 58, 59, 60, 61, 62
sWI = 63
PX, PW1, PW2, PG, PWF, PWG, PWO, POUT, PDBG, PWS = 64, 66, 68, 70, 72, 74, 76, 78, 80, 82
sC2, sTC, sOOB, sXI, sXJ, sHO = 84, 85, 86, 87, 88, 89
sST = 90
sROT2 = 92
sM0 = 94

vL, vT, vSTAMP, vC1 = 0, 254, 253, 252


class G(Asm):
    def __init__(self, opt):
        super().__init__()
        self.opt = opt
        self.vm = []
        self.nstamp = 0

    def op(self, text, tag):
        self(text)
        self.vm.append(tag)

    def vm_wait(self, tag):
        idx = max(i for i, t in enumerate(self.vm) if t == tag)
        n = len(self.vm) - 1 - idx
        self(f"s_waitcnt vmcnt({min(n, 63)})")

    def vm_all(self):
        self("s_waitcnt vmcnt(0)")

    def lgkm(self, n):
        self(f"s_waitcnt lgkmcnt({n})")

    def stamp(self):
        if not self.opt.stamps:
            return
        n = self.nstamp
        self.nstamp += 1
        self(f"s_memrealtime s[{sST}:{sST+1}]")
        self("s_waitcnt lgkmcnt(0)")
        self(f"v_writelane_b32 v{vSTAMP}, s{sST}, {n}")

    def srd(self, d, ptr, off_sgpr, nbytes):
        if off_sgpr is None:
            self(f"s_mov_b32 s{d}, s{ptr}")
            self(f"s_mov_b32 s{d+1}, s{ptr+1}")
        else:
            self(f"s_add_u32 s{d}, s{ptr}, s{off_sgpr}")
            self(f"s_addc_u32 s{d+1}, s{ptr+1}, 0")
        self(f"s_mov_b32 s{d+2}, {nbytes}")
        self(f"s_mov_b32 s{d+3}, 0x00020000")


def vr(b, n=1):
    return f"v{b}" if n == 1 else f"v[{b}:{b+n-1}]"


def ar(b, n=1):
    return f"a{b}" if n == 1 else f"a[{b}:{b+n-1}]"


def gelu_group(a, xs, t1, t2, scale=None):
    for x, t in zip(xs, t1):
        a(f"v_mul_f32 v{t}, v{x}, v{x}")
    for t in t1:
        a(f"v_fma_f32 v{t}, v{t}, s{sC2}, v{vC1}")
    for x, t in zip(xs, t1):
        a(f"v_mul_f32 v{t}, v{t}, v{x}")
    for t in t1:
        a(f"v_exp_f32 v{t}, v{t}")
    if scale is not None:
        for x in xs:
            a(f"v_mul_f32 v{x}, s{scale}, v{x}")
    for t in t1:
        a(f"v_add_f32 v{t}, 1.0, v{t}")
    for t in t1:
        a(f"v_rcp_f32 v{t}, v{t}")
    for x, t in zip(xs, t1):
        a(f"v_mul_f32 v{x}, v{x}, v{t}")


def w_pattern(a, dst, tmp):
    a(f"v_lshrrev_b32 v{tmp}, 2, v{vL}")
    a(f"v_and_b32 v{tmp}, 4, v{tmp}")
    a(f"v_and_b32 v{dst}, 7, v{vL}")
    a(f"v_xor_b32 v{dst}, v{dst}, v{tmp}")
    a(f"v_lshlrev_b32 v{dst}, 4, v{dst}")
    a(f"v_lshrrev_b32 v{tmp}, 3, v{vL}")
    a(f"v_lshl_add_u32 v{dst}, v{tmp}, 10, v{dst}")


def poll(a, load_text, cmp_regs, first_tag=None):
    L = a.newlabel("Lpoll")
    Lok = a.newlabel("Lok")
    if first_tag is None:
        a.op(load_text, "poll")
        first_tag = "poll"
    a.vm_wait(first_tag)

    def compare():
        a(f"v_cmp_ne_u32 vcc, v{vT}, v{cmp_regs[0]}")
        for r in cmp_regs[1:]:
            a(f"v_cmp_ne_u32 s[{sM0}:{sM0+1}], v{vT}, v{r}")
            a(f"s_or_b64 vcc, vcc, s[{sM0}:{sM0+1}]")
    compare()
    a(f"s_cbranch_vccz {Lok}")
    a(f"s_mov_b32 s{sSPIN}, {SPIN}")
    a.label(L)
    a(load_text)
    a("s_waitcnt vmcnt(0)")
    compare()
    a(f"s_cbranch_vccz {Lok}")
    a(f"s_sub_u32 s{sSPIN}, s{sSPIN}, 1")
    a(f"s_cmp_lg_u32 s{sSPIN}, 0")
    a(f"s_cbranch_scc1 {L}")
    a.label(Lok)
    a("s_nop 1")


def prologue(a):
    o = a.opt
    a(f"s_cmp_ge_u32 s2, 256")
    a("s_cbranch_scc1 Lexit")
    a("s_load_dwordx16 s[64:79], s[0:1], 0")
    a("s_load_dwordx4 s[80:83], s[0:1], 64")
    a(f"s_getpc_b64 s[{SC}:{SC+1}]")
    a("v_lshrrev_b32 v1, 6, v0")
    a("v_and_b32 v0, 63, v0")
    a(f"v_readfirstlane_b32 s{sW}, v1")
    a(f"s_and_b32 s{sXCD}, s2, 7")
    a(f"s_lshr_b32 s{sIDX}, s2, 3")
    a(f"s_lshr_b32 s{sB}, s{sXCD}, 2")
    a(f"s_bfe_u32 s{sMT1}, s{sXCD}, 0x10001")
    a(f"s_lshl_b32 s{sMT1}, s{sMT1}, 3")
    a(f"s_lshr_b32 s{sROT}, s{sIDX}, 2")
    a(f"s_add_u32 s{sMT1}, s{sMT1}, s{sROT}")
    a(f"s_and_b32 s{sNT1}, s{sXCD}, 1")
    a(f"s_lshl_b32 s{sNT1}, s{sNT1}, 2")
    a(f"s_and_b32 s{sT0}, s{sIDX}, 3")
    a(f"s_add_u32 s{sNT1}, s{sNT1}, s{sT0}")
    a(f"s_mul_i32 s{sLB}, s{sW}, {RING}")
    a(f"s_lshl_b32 s{sXI}, s{sT0}, 14")
    a(f"s_mov_b32 s{sOOB}, {OOB}")
    if not o.rot1:
        a(f"s_mov_b32 s{sROT}, 0")
        a(f"s_mov_b32 s{sXI}, 0")
    a(f"s_and_b32 s{SC}, s{SC}, 0xffffff00")
    a(f"s_mov_b32 s{SC+2}, Lcode_end-{NAME}")
    a(f"s_mov_b32 s{SC+3}, 0x00020000")
    a(f"s_lshl_b32 s{sT1}, s{sIDX}, 3")
    a(f"s_lshl_b32 s{sT2}, s{sW}, 1")
    a(f"s_add_u32 s{sT1}, s{sT1}, s{sT2}")
    a(f"v_add_u32 v2, s{sT1}, v{vL}")
    a("v_lshlrev_b32 v2, 7, v2")
    a(f"v_mov_b32 v3, s{sOOB}")
    a(f"v_cmp_gt_u32 vcc, 2, v{vL}")
    a("v_cndmask_b32 v2, v3, v2, vcc")
    a(f"v_lshrrev_b32 v6, 4, v{vL}")
    a(f"v_and_b32 v7, 15, v{vL}")
    a("v_lshlrev_b32 v7, 4, v7")
    a(f"s_lshl_b32 s{sT1}, s{sW}, 8")
    a(f"v_add_u32 v7, s{sT1}, v7")
    a("v_lshl_add_u32 v4, v6, 10, v7")
    a("v_add_u32 v4, 1024, v4")
    a(f"s_cmp_lg_u32 s{sMT1}, 0")
    a(f"s_cselect_b32 s{sT2}, 48, 64")
    a(f"v_cmp_le_u32 vcc, s{sT2}, v{vL}")
    a("v_cndmask_b32 v5, v3, v7, vcc")
    w_pattern(a, 8, 6)
    a(f"s_lshl_b32 s{sT1}, s{sW}, 17")
    a(f"v_add_u32 v8, s{sT1}, v8")
    a("v_add_u32 v9, 7168, v8")
    a("v_mov_b32 v10, 0")
    a(f"s_mul_i32 s{sT3}, s{sB}, 1024000")
    a(f"s_lshl_b32 s{sT4}, s{sMT1}, 16")
    a(f"s_add_u32 s{sT3}, s{sT3}, s{sT4}")
    a(f"s_sub_u32 s{SX+2}, {1024000+1024}, s{sT4}")
    a(f"s_mov_b32 s{SX+3}, 0x00020000")
    a(f"s_lshl_b32 s{sT5}, s{sNT1}, 7")
    a(f"s_sub_u32 s{SW1+2}, 1572864, s{sT5}")
    a(f"s_mov_b32 s{SW1+3}, 0x00020000")
    a(f"s_mov_b32 s{SWS+2}, {WS_BYTES}")
    a(f"s_mov_b32 s{SWS+3}, 0x00020000")
    a(f"s_lshl_b32 s{sWI}, s{sROT}, 14")
    a.op(f"buffer_load_dword v11, v2, s[{SC}:{SC+3}], 0 offen", "code")
    a("s_waitcnt lgkmcnt(0)")
    a.stamp()
    a(f"s_add_u32 s{SX}, s{PX}, s{sT3}")
    a(f"s_addc_u32 s{SX+1}, s{PX+1}, 0")
    a(f"s_sub_u32 s{SX}, s{SX}, 1024")
    a(f"s_subb_u32 s{SX+1}, s{SX+1}, 0")
    a(f"s_mov_b32 m0, s{sLB}")
    a(f"s_add_u32 s{SW1}, s{PW1}, s{sT5}")
    a.op(f"buffer_load_dwordx4 v5, s[{SX}:{SX+3}], 0 offen lds", "X")
    a(f"s_addc_u32 s{SW1+1}, s{PW1+1}, 0")
    a(f"s_add_u32 s{sT4}, s{sLB}, 1024")
    cur, nxt = sXI, sXJ
    for n in range(16):
        a(f"s_add_u32 s{nxt}, s{cur}, 4096")
        a(f"s_and_b32 s{nxt}, s{nxt}, 0xffff")
        a(f"s_lshr_b32 s{sT0}, s{nxt}, 8")
        a(f"v_xor_b32 v{6 + (n & 1)}, s{sT0}, v4")
        a(f"s_lshr_b32 s{sT1}, s{cur}, 2")
        a(f"s_add_u32 m0, s{sT4}, s{sT1}")
        a("s_nop 0")
        a.op(f"buffer_load_dwordx4 v{6 + (n & 1)}, s[{SX}:{SX+3}], s{cur} offen lds", "X")
        cur, nxt = nxt, cur
    a(f"s_mov_b32 s{SWS}, s{PWS}")
    a(f"s_mov_b32 s{SWS+1}, s{PWS+1}")


W1_SLOT = [18 + 2 * j for j in range(11)] + [2 * j for j in range(9)] + [18 + 2 * j for j in range(4)]


def w1_issue(a, j):
    jc, tau = divmod(j, 3)
    if tau == 0 and jc > 0:
        a(f"s_add_u32 s{sWI}, s{sWI}, 16384")
        a(f"s_and_b32 s{sWI}, s{sWI}, 0x1ffff")
    a(f"s_add_u32 m0, s{sLB}, {W1_SLOT[j]*1024}")
    if tau:
        a(f"s_add_u32 s{sT0}, s{sWI}, {tau*524288}")
        so = sT0
    else:
        a("s_nop 0")
        so = sWI
    a.op(f"buffer_load_dwordx4 v8, s[{SW1}:{SW1+3}], s{so} offen lds", f"w1_{j}")
    a.op(f"buffer_load_dwordx4 v9, s[{SW1}:{SW1+3}], s{so} offen offset:1024 lds", f"w1_{j}")


vQ = 232
vQF = 236
vA2 = 240


def quad_setup(a):
    w_pattern(a, vQ, 1)
    a(f"v_xor_b32 v{vQ+1}, 32, v{vQ}")
    a(f"v_add_u32 v{vQ+1}, 7168, v{vQ+1}")
    a(f"v_add_u32 v{vQ+2}, {2*7168}, v{vQ}")
    a(f"v_add_u32 v{vQ+3}, {2*7168}, v{vQ+1}")
    a(f"s_lshl_b32 s{sT0}, s{sW}, 8")
    a(f"s_lshl_b32 s{sT1}, s{sW}, 17")
    for i in range(4):
        a(f"v_add_u32 v{vQF+i}, s{sT0}, v{vQ+i}")
    for i in range(4):
        a(f"v_add_u32 v{vQ+i}, s{sT1}, v{vQ+i}")
    a(f"v_lshrrev_b32 v1, 4, v{vL}")
    a(f"v_bfe_u32 v2, v{vL}, 2, 2")
    a("v_lshlrev_b32 v2, 7, v2")
    a("v_lshl_add_u32 v2, v1, 10, v2")
    a(f"v_and_b32 v3, 3, v{vL}")
    a("v_lshl_add_u32 v2, v3, 3, v2")
    a(f"v_add_u32 v2, s{sLB}, v2")
    a(f"v_bfe_u32 v3, v{vL}, 3, 1")
    a("v_lshlrev_b32 v3, 1, v3")
    a("v_and_b32 v1, 1, v1")
    a("v_or_b32 v3, v3, v1")
    for nt in range(4):
        a(f"v_xor_b32 v1, {nt}, v3")
        a(f"v_lshl_add_u32 v{vA2+nt}, v1, 5, v2")


def quad_issue(a, q, slotq):
    a(f"s_add_u32 m0, s{sLB}, {slotq*4096}")
    if q < 12:
        jc, tau = divmod(q, 3)
        if tau == 0:
            if jc > 0:
                a(f"s_add_u32 s{sWI}, s{sWI}, 32768")
                a(f"s_and_b32 s{sWI}, s{sWI}, 0x1ffff")
            else:
                a(f"s_lshl_b32 s{sWI}, s{sROT2}, 15")
            so = sWI
        else:
            a(f"s_add_u32 s{sT0}, s{sWI}, {tau*524288}")
            so = sT0
        for i in range(4):
            a.op(f"buffer_load_dwordx4 v{vQ+i}, s[{SW2}:{SW2+3}], s{so} offen offset:{1024*i} lds", f"q{q}")
    else:
        half, ks = divmod(q - 12, 2)
        a(f"s_mov_b32 s{sT0}, {ks*32768 + half*128}")
        for i in range(4):
            a.op(f"buffer_load_dwordx4 v{vQF+i}, s[{SWF}:{SWF+3}], s{sT0} offen offset:{1024*i} lds", f"q{q}")


def quad_read(a, q, slotq):
    for nt in range(4):
        if q < 12:
            d = (q * 4 + nt) * 4
        else:
            half, ks = divmod(q - 12, 2)
            d = 192 + ((half * 4 + nt) * 2 + ks) * 4
        a(f"ds_read_b64_tr_b16 {ar(d,2)}, v{vA2+nt} offset:{slotq*4096}")
        a(f"ds_read_b64_tr_b16 {ar(d+2,2)}, v{vA2+nt} offset:{slotq*4096+512}")


class QuadStream:
    def __init__(self, a):
        self.a = a
        self.next = 0
        self.inflight = []

    def issue(self, slotq):
        quad_issue(self.a, self.next, slotq)
        self.inflight.append((self.next, slotq))
        self.next += 1


XF, WB, ACC = 16, 112, 128
vGA, vGB, vGD = 160, 164, 168


def s1(a, qs):
    o = a.opt
    a(f"s_mov_b32 s{sT1}, {E_OFF}")
    a.op(f"buffer_load_dword v{vT}, v10, s[{SWS}:{SWS+3}], s{sT1} offen sc1", "E")
    for j in range(11):
        w1_issue(a, j)
    a.stamp()
    a(f"s_and_b32 s{sDS}, s{sXCD}, 3")
    a(f"s_lshl_b32 s{sDS}, s{sDS}, 1")
    a(f"s_and_b32 s{sNH}, s{sIDX}, 1")
    a(f"s_add_u32 s{sDS}, s{sDS}, s{sNH}")
    a(f"s_lshr_b32 s{sMT2}, s{sIDX}, 1")
    a(f"s_and_b32 s{sTT4}, s{sXCD}, 3")
    a(f"s_lshl_b32 s{sTT4}, s{sTT4}, 4")
    a(f"s_add_u32 s{sTT4}, s{sTT4}, s{sMT2}")
    a(f"s_and_b32 s{sROT2}, s{sMT2}, 3")
    if not o.rot2:
        a(f"s_mov_b32 s{sROT2}, 0")
    a(f"s_lshl_b32 s{sT1}, s{sDS}, 7")
    a.srd(SW2, PW2, sT1, 0)
    a(f"s_sub_u32 s{SW2+2}, 1572864, s{sT1}")
    a(f"s_lshl_b32 s{sT1}, s{sDS}, 16")
    a.srd(SWF, PWF, sT1, 65536)
    a(f"s_lshl_b32 s{sT1}, s{sNH}, 9")
    a.srd(SWO, PWO, sT1, 0)
    a(f"s_sub_u32 s{SWO+2}, 524288, s{sT1}")
    a(f"s_mul_i32 s{sT1}, s{sB}, 2048000")
    a.srd(SOUT, POUT, sT1, 2048000)
    a.srd(SGG, PG, None, 16384)
    a.srd(SWG, PWG, None, 524288)
    a(f"s_mov_b32 s{sC2}, {f32(GC2)}")
    a(f"s_mov_b32 s{sTC}, {f32(TC)}")
    a(f"v_mov_b32 v{vC1}, {f32(GC1)}")
    a(f"v_and_b32 v1, 15, v{vL}")
    a("v_lshlrev_b32 v1, 2, v1")
    a(f"v_bfe_u32 v2, v{vL}, 4, 1")
    a("v_lshl_add_u32 v1, v2, 1, v1")
    a("v_add_u32 v1, 3, v1")
    a(f"v_lshrrev_b32 v2, 5, v{vL}")
    for tau in range(3):
        a(f"v_add_u32 v3, {tau}, v1")
        a("v_bfe_u32 v6, v3, 2, 4")
        a("v_xor_b32 v6, v6, v2")
        a("v_lshlrev_b32 v6, 4, v6")
        a("v_lshl_add_u32 v6, v3, 8, v6")
        a(f"v_add_u32 v{12+tau}, s{sLB}, v6")
    a(f"v_bfe_u32 v1, v{vL}, 2, 2")
    a("v_lshlrev_b32 v1, 7, v1")
    a("v_lshl_add_u32 v1, v2, 10, v1")
    a(f"v_and_b32 v3, 3, v{vL}")
    a("v_lshl_add_u32 v1, v3, 3, v1")
    a(f"v_add_u32 v1, s{sLB}, v1")
    a(f"v_bfe_u32 v3, v{vL}, 4, 1")
    a(f"v_bfe_u32 v6, v{vL}, 3, 1")
    a("v_lshl_or_b32 v3, v6, 1, v3")
    a("v_lshl_add_u32 v4, v3, 5, v1")
    a("v_xor_b32 v3, 2, v3")
    a("v_lshl_add_u32 v5, v3, 5, v1")
    quad_setup(a)
    a(f"s_lshr_b32 s{sT1}, s{sIDX}, 3")
    a(f"s_and_b32 s{sT2}, s{sIDX}, 7")
    a(f"s_lshl_b32 s{sT3}, s{sXCD}, 3")
    a(f"s_add_u32 s{sT2}, s{sT2}, s{sT3}")
    a(f"s_lshl_b32 s{sT3}, s{sT1}, 7")
    a(f"s_lshl_b32 s{sT4}, s{sW}, 5")
    a(f"s_add_u32 s{sT3}, s{sT3}, s{sT4}")
    a(f"v_and_b32 v1, 31, v{vL}")
    a(f"v_add_u32 v1, s{sT3}, v1")
    a("v_lshlrev_b32 v1, 10, v1")
    a(f"s_lshl_b32 s{sT4}, s{sT2}, 4")
    a(f"v_add_u32 v15, s{sT4}, v1")
    a(f"v_and_b32 v1, 15, v{vL}")
    a("v_lshlrev_b32 v1, 10, v1")
    a(f"v_lshrrev_b32 v3, 4, v{vL}")
    a("v_lshl_add_u32 v1, v3, 4, v1")
    a(f"s_lshl_b32 s{sT3}, s{sT3}, 1")
    a(f"v_add_u32 v244, s{sT3}, v1")
    a("v_lshlrev_b32 v1, 7, v3")
    a(f"v_bfe_u32 v3, v{vL}, 2, 2")
    a("v_lshl_add_u32 v1, v3, 4, v1")
    a(f"v_and_b32 v3, 1, v{vL}")
    a("v_lshl_add_u32 v1, v3, 3, v1")
    a(f"s_add_u32 s{sT3}, s{sLB}, {26*1024}")
    a(f"v_add_u32 v245, s{sT3}, v1")
    a(f"s_lshl_b32 s{sT1}, s{sT1}, 14")
    a(f"s_lshl_b32 s{sT2}, s{sT2}, 7")
    a(f"s_add_u32 s{sT1}, s{sT1}, s{sT2}")
    a(f"s_add_u32 s93, s{sT1}, {G_OFF}")
    a(f"v_lshrrev_b32 v1, 5, v{vL}")
    a("v_lshlrev_b32 v1, 13, v1")
    a(f"v_and_b32 v3, 15, v{vL}")
    a("v_lshl_add_u32 v1, v3, 4, v1")
    a(f"v_bfe_u32 v6, v{vL}, 4, 1")
    a("v_lshl_add_u32 v1, v6, 3, v1")
    a(f"s_cmp_eq_u32 s{sW}, 0")
    a(f"s_cselect_b32 s{sT2}, 8, 0")
    a(f"v_cmp_gt_u32 vcc, s{sT2}, v3")
    a(f"v_mov_b32 v6, s{sOOB}")
    a("v_cndmask_b32 v246, v6, v1, vcc")
    a.vm_wait("X")
    a.stamp()
    a(f"s_lshl_b32 s{sT1}, s{sROT}, 5")
    for jc in range(8):
        if jc:
            a(f"s_add_u32 s{sT1}, s{sT1}, 32")
            a(f"s_and_b32 s{sT1}, s{sT1}, 0xff")
        for tau in range(3):
            j = 3 * jc + tau
            a(f"v_xor_b32 v{6 + (j & 1)}, s{sT1}, v{12+tau}")
            a(f"ds_read_b128 {vr(XF+4*j,4)}, v{6 + (j & 1)}")
    a.lgkm(0)
    for j in range(11, 20):
        w1_issue(a, j)
    a.vm_wait("E")
    a(f"v_add_u32 v{vT}, 1, v{vT}")
    a(f"v_or_b32 v{vT}, 0x80000000, v{vT}")

    def mfmas(j):
        for nt in range(2):
            c = "0" if j == 0 else vr(ACC + 16 * nt, 16)
            a(f"v_mfma_f32_32x32x16_bf16 {vr(ACC+16*nt,16)}, {vr(WB + 8*(j & 1) + 4*nt, 4)}, {vr(XF+4*j,4)}, {c}")

    w2a_at = {7 + 0: 7, 13: 0, 15: 1, 17: 2, 19: 3}
    na = 0
    for j in range(24):
        a.vm_wait(f"w1_{j}")
        b = WB + 8 * (j & 1)
        so = W1_SLOT[j] * 1024
        for nt in range(2):
            a(f"ds_read_b64_tr_b16 {vr(b+4*nt,2)}, v{4+nt} offset:{so}")
            a(f"ds_read_b64_tr_b16 {vr(b+4*nt+2,2)}, v{4+nt} offset:{so+512}")
        if j > 0:
            a.lgkm(4)
            mfmas(j - 1)
        if 1 <= j <= 4:
            w1_issue(a, 19 + j)
        if j == 5:
            a(f"s_add_u32 m0, s{sLB}, {26*1024}")
            a("s_nop 0")
            a.op(f"buffer_load_dwordx4 v15, s[{SWG}:{SWG+3}], 0 offen lds", "G")
            a.op(f"buffer_load_dwordx4 {vr(vGA,4)}, v244, s[{SGG}:{SGG+3}], 0 offen", "G")
        if j in w2a_at and na < o.na:
            qs.issue(w2a_at[j])
            na += 1
    a.lgkm(0)
    mfmas(23)
    a.vm_wait("G")
    a(f"ds_read_b64_tr_b16 {vr(vGB,2)}, v245")
    a(f"ds_read_b64_tr_b16 {vr(vGB+2,2)}, v245 offset:64")
    a(f"v_lshlrev_b32 v1, 4, v{vL}")
    a(f"s_add_u32 s{sT1}, s{sLB}, 32768")
    a(f"v_add_u32 v2, s{sT1}, v1")
    a(f"v_add_u32 v3, {27*1024}, v1")
    a(f"v_add_u32 v6, {27*1024 + 2*RING}, v1")
    a(f"s_add_u32 s{sT1}, s{sLB}, {27*1024}")
    a(f"v_add_u32 v7, s{sT1}, v1")
    a(f"v_lshrrev_b32 v8, 5, v{vL}")
    a(f"s_lshl_b32 s{sT1}, s{sW}, 1")
    a(f"v_add_u32 v8, s{sT1}, v8")
    a(f"v_and_b32 v9, 31, v{vL}")
    a("v_lshlrev_b32 v9, 4, v9")
    a("v_lshl_add_u32 v9, v8, 10, v9")
    a("v_add_u32 v9, 32768, v9")
    a(f"v_add_u32 v10, {2*RING}, v9")
    a.lgkm(0)
    a(f"v_mfma_f32_16x16x32_bf16 {vr(vGD,4)}, {vr(vGA,4)}, {vr(vGB,4)}, 0")
    for q in range(8):
        a(f"ds_write_b128 v2, {vr(ACC+4*q,4)} offset:{q*1024}")
    a(f"ds_write_b128 v7, {vr(vGD,4)}")
    a.lgkm(0)
    a("s_barrier")
    a.stamp()
    RB = 16
    for wp in range(4):
        for hh in range(2):
            a(f"ds_read_b128 {vr(RB+(wp*2+hh)*4,4)}, v{9 + (wp >> 1)} offset:{(wp & 1)*RING + hh*512}")
    GB = 48
    for wp in range(4):
        a(f"ds_read_b128 {vr(GB+4*wp,4)}, v{3 if wp < 2 else 6} offset:{(wp & 1)*RING}")
    a(f"v_bfe_u32 v11, v{vL}, 4, 1")
    a("v_lshlrev_b32 v11, 18, v11")
    a("v_lshl_add_u32 v11, v8, 12, v11")
    a(f"v_and_b32 v1, 15, v{vL}")
    a("v_lshl_add_u32 v11, v1, 4, v11")
    a(f"s_lshl_b32 s{sT1}, s{sB}, 19")
    a(f"s_lshl_b32 s{sT2}, s{sNT1}, 15")
    a(f"s_add_u32 s{sT1}, s{sT1}, s{sT2}")
    a(f"s_lshl_b32 s{sT2}, s{sMT1}, 8")
    a(f"s_add_u32 s{sHO}, s{sT1}, s{sT2}")
    if H_OFF:
        a(f"s_add_u32 s{sHO}, s{sHO}, {H_OFF}")
    a.lgkm(4)
    X8 = [64 + c for c in range(8)]
    src = lambda wp, c: RB + (wp * 2 + (c >> 2)) * 4 + (c & 3)
    for c in range(8):
        a(f"v_add_f32 v{X8[c]}, v{src(0,c)}, v{src(1,c)}")
    for c in range(8):
        a(f"v_add_f32 v{72+c}, v{src(2,c)}, v{src(3,c)}")
    for c in range(8):
        a(f"v_add_f32 v{X8[c]}, v{X8[c]}, v{72+c}")
    gelu_group(a, X8, [72 + c for c in range(8)], None)
    for c in range(4):
        a(f"v_cvt_pk_bf16_f32 v{80+c}, v{X8[2*c]}, v{X8[2*c+1]}")
    a.op(f"buffer_store_dwordx4 {vr(80,4)}, v11, s[{SWS}:{SWS+3}], s{sHO} offen sc1", "hst")
    a.lgkm(0)
    for r in range(4):
        a(f"v_add_f32 v{84+r}, v{GB+r}, v{GB+4+r}")
        a(f"v_add_f32 v{88+r}, v{GB+8+r}, v{GB+12+r}")
    for r in range(4):
        a(f"v_add_f32 v{84+r}, v{84+r}, v{88+r}")
    for r in range(4):
        a(f"v_mul_f32 v{84+r}, s{sTC}, v{84+r}")
    a("v_cvt_pk_bf16_f32 v88, v84, v85")
    a("v_cvt_pk_bf16_f32 v89, v86, v87")
    a.op(f"buffer_store_dwordx2 v[88:89], v246, s[{SWS}:{SWS+3}], s93 offen sc1", "gst")
    a.vm_all()
    a("s_barrier")
    Ls = a.newlabel("Lf1")
    a(f"s_cmp_lg_u32 s{sW}, 0")
    a(f"s_cbranch_scc1 {Ls}")
    a(f"s_lshl_b32 s{sT1}, s{sB}, 4")
    a(f"s_add_u32 s{sT1}, s{sT1}, s{sMT1}")
    a(f"s_lshl_b32 s{sT1}, s{sT1}, 3")
    a(f"s_add_u32 s{sT1}, s{sT1}, s{sNT1}")
    a(f"s_lshl_b32 s{sT1}, s{sT1}, 2")
    a(f"s_add_u32 s{sT1}, s{sT1}, {F1_OFF}")
    a("v_mov_b32 v1, 0")
    a("s_mov_b64 exec, 1")
    a(f"buffer_store_dword v{vT}, v1, s[{SWS}:{SWS+3}], s{sT1} offen sc1")
    a("s_mov_b64 exec, -1")
    a.label(Ls)
    a.stamp()


HF, ACC2 = 16, 64


def s2(a, qs):
    o = a.opt
    used = {s for (_, s) in qs.inflight}
    free = [q for q in (4, 5, 6, 8, 9, 3, 2, 1, 0, 7) if q not in used]
    TOT = 16
    while free and qs.next < TOT:
        qs.issue(free.pop(0))
    a(f"v_and_b32 v1, 7, v{vL}")
    a(f"v_bfe_u32 v2, v{vL}, 3, 1")
    a(f"s_cmp_eq_u32 s{sMT2}, 0")
    a(f"s_cselect_b32 s{sT1}, 0, 8")
    a("v_xor_b32 v2, 1, v2")
    a(f"v_mul_lo_u32 v2, v2, s{sT1}")
    a("v_sub_u32 v1, v1, v2")
    a(f"s_lshl_b32 s{sT1}, s{sB}, 4")
    a(f"s_add_u32 s{sT1}, s{sT1}, s{sMT2}")
    a(f"s_lshl_b32 s{sT1}, s{sT1}, 3")
    a(f"v_add_u32 v1, s{sT1}, v1")
    a("v_lshlrev_b32 v1, 2, v1")
    a(f"s_mov_b32 s{sHO}, {F1_OFF}")
    poll_txt = f"buffer_load_dword v2, v1, s[{SWS}:{SWS+3}], s{sHO} offen sc1"
    polled = False
    prev = None
    while qs.inflight:
        q, slot = qs.inflight.pop(0)
        a.vm_wait(f"q{q}")
        quad_read(a, q, slot)
        if prev is not None and qs.next < TOT:
            a.lgkm(8)
            qs.issue(prev)
        prev = slot
        if qs.next == TOT and not polled:
            a.op(poll_txt, "poll1")
            polled = True
    a(f"v_and_b32 v5, 15, v{vL}")
    a(f"s_lshl_b32 s{sT1}, s{sMT2}, 4")
    a(f"v_add_u32 v5, s{sT1}, v5")
    a(f"v_lshrrev_b32 v6, 4, v{vL}")
    a("v_lshlrev_b32 v6, 12, v6")
    a("v_lshl_add_u32 v3, v5, 4, v6")
    a(f"s_lshl_b32 s{sT1}, s{sW}, 16")
    a(f"v_add_u32 v3, s{sT1}, v3")
    a("v_subrev_u32 v4, 16, v3")
    a("v_cmp_eq_u32 vcc, 0, v5")
    a(f"v_mov_b32 v6, s{sOOB}")
    a("v_cndmask_b32 v4, v4, v6, vcc")
    a.lgkm(0)
    a.stamp()
    poll(a, poll_txt, [2], first_tag="poll1")
    a.stamp()
    a(f"s_lshl_b32 s{sT1}, s{sB}, 19")
    if H_OFF:
        a(f"s_add_u32 s{sT1}, s{sT1}, {H_OFF}")
    a(f"s_lshl_b32 s{sT2}, s{sROT2}, 14")
    for jc in range(4):
        if jc:
            a(f"s_add_u32 s{sT2}, s{sT2}, 16384")
            a(f"s_and_b32 s{sT2}, s{sT2}, 0xffff")
        a(f"s_add_u32 s{sT3}, s{sT1}, s{sT2}")
        a(f"s_add_u32 s{sT4}, s{sT3}, 262144")
        for tau in range(3):
            j = 3 * jc + tau
            va = 4 if tau == 0 else 3
            so = sT3 if tau == 1 else sT4
            a.op(f"buffer_load_dwordx4 {vr(HF+4*j,4)}, v{va}, s[{SWS}:{SWS+3}], s{so} offen sc1", f"h{j}")
    wo_setup(a)
    for n in range(o.nb):
        wo_issue(a, n, n)
    for j in range(12):
        a.vm_wait(f"h{j}")
        for nt in range(4):
            c = "0" if j == 0 else vr(ACC2 + 4 * nt, 4)
            a(f"v_mfma_f32_16x16x32_bf16 {vr(ACC2+4*nt,4)}, {ar((j*4+nt)*4,4)}, {vr(HF+4*j,4)}, {c}")
    a.stamp()
    a(f"v_lshlrev_b32 v1, 4, v{vL}")
    a(f"s_add_u32 s{sT1}, s{sLB}, 32768")
    a(f"v_add_u32 v2, s{sT1}, v1")
    a(f"s_lshl_b32 s{sT1}, s{sW}, 10")
    a(f"s_add_u32 s{sT1}, s{sT1}, 32768")
    a(f"v_add_u32 v3, s{sT1}, v1")
    a(f"v_add_u32 v4, {2*RING}, v3")
    a(f"v_and_b32 v5, 15, v{vL}")
    a("v_mul_u32_u24 v5, 144, v5")
    a(f"v_lshrrev_b32 v7, 4, v{vL}")
    a("v_lshl_add_u32 v6, v7, 4, v5")
    a("v_add_u32 v6, 36864, v6")
    a("v_lshl_add_u32 v5, v7, 3, v5")
    a(f"s_lshl_b32 s{sT1}, s{sW}, 5")
    a(f"s_add_u32 s{sT1}, s{sT1}, 36864")
    a(f"v_add_u32 v5, s{sT1}, v5")
    for nt in range(4):
        a(f"ds_write_b128 v2, {vr(ACC2+4*nt,4)} offset:{nt*1024}")
    a.lgkm(0)
    a("s_barrier")
    RB = 80
    for wp in range(4):
        a(f"ds_read_b128 {vr(RB+4*wp,4)}, v{3 + (wp >> 1)} offset:{(wp & 1)*RING}")
    a.lgkm(0)
    for r in range(4):
        a(f"v_add_f32 v{96+r}, v{RB+r}, v{RB+4+r}")
        a(f"v_add_f32 v{100+r}, v{RB+8+r}, v{RB+12+r}")
    for r in range(4):
        a(f"v_add_f32 v{96+r}, v{96+r}, v{100+r}")
    gelu_group(a, [96 + r for r in range(4)], [100 + r for r in range(4)], None, scale=sTC)
    a("v_cvt_pk_bf16_f32 v104, v96, v97")
    a("v_cvt_pk_bf16_f32 v105, v98, v99")
    a("ds_write_b64 v5, v[104:105]")
    a.lgkm(0)
    a("s_barrier")
    a("ds_read_b128 v[108:111], v6")
    a("ds_read_b128 v[112:115], v6 offset:64")
    a(f"v_lshrrev_b32 v7, 4, v{vL}")
    a("v_lshlrev_b32 v7, 15, v7")
    a(f"v_and_b32 v8, 15, v{vL}")
    a("v_lshl_add_u32 v7, v8, 4, v7")
    a(f"s_lshl_b32 s{sT1}, s{sW}, 10")
    a(f"v_add_u32 v7, s{sT1}, v7")
    a(f"s_lshl_b32 s{sT1}, s{sB}, 6")
    a(f"s_lshl_b32 s{sT2}, s{sMT2}, 2")
    a(f"s_add_u32 s{sT1}, s{sT1}, s{sT2}")
    a(f"s_lshl_b32 s{sT1}, s{sT1}, 15")
    a(f"s_lshl_b32 s{sT2}, s{sDS}, 12")
    a(f"s_add_u32 s{sT1}, s{sT1}, s{sT2}")
    a(f"s_add_u32 s{sHO}, s{sT1}, {P_OFF}")
    a.lgkm(0)
    D = 128
    for ks in range(2):
        for et in range(8):
            c = "0" if ks == 0 else vr(D + 4 * et, 4)
            a(f"v_mfma_f32_16x16x32_bf16 {vr(D+4*et,4)}, {vr(108+4*ks,4)}, {ar(192+(et*2+ks)*4,4)}, {c}")
    for jj in range(4):
        for k in range(2):
            et = 2 * jj + k
            a(f"v_cvt_pk_bf16_f32 v{160+4*jj+2*k}, v{D+4*et}, v{D+4*et+1}")
            a(f"v_cvt_pk_bf16_f32 v{160+4*jj+2*k+1}, v{D+4*et+2}, v{D+4*et+3}")
        a.op(f"buffer_store_dwordx4 {vr(160+4*jj,4)}, v7, s[{SWS}:{SWS+3}], s{sHO} offen offset:{jj*256} sc1", "pst")
    a.vm_all()
    a("s_barrier")
    Ls = a.newlabel("Lf3")
    a(f"s_cmp_lg_u32 s{sW}, 0")
    a(f"s_cbranch_scc1 {Ls}")
    a(f"s_lshl_b32 s{sT1}, s{sB}, 4")
    a(f"s_add_u32 s{sT1}, s{sT1}, s{sMT2}")
    a(f"s_lshl_b32 s{sT1}, s{sT1}, 3")
    a(f"s_add_u32 s{sT1}, s{sT1}, s{sDS}")
    a(f"s_lshl_b32 s{sT1}, s{sT1}, 2")
    a(f"s_add_u32 s{sT1}, s{sT1}, {F3_OFF}")
    a("v_mov_b32 v1, 0")
    a("s_mov_b64 exec, 1")
    a(f"buffer_store_dword v{vT}, v1, s[{SWS}:{SWS+3}], s{sT1} offen sc1")
    a("s_mov_b64 exec, -1")
    a.label(Ls)
    a.stamp()


vO = 232
vAO = 236


def wo_setup(a):
    w_pattern(a, vO, 1)
    a(f"s_lshl_b32 s{sT1}, s{sW}, 7")
    a(f"v_add_u32 v{vO}, s{sT1}, v{vO}")
    for i in range(1, 4):
        a(f"v_add_u32 v{vO+i}, {7168*i}, v{vO}")
    a(f"v_lshrrev_b32 v1, 5, v{vL}")
    a(f"v_bfe_u32 v2, v{vL}, 2, 2")
    a("v_lshl_add_u32 v1, v1, 2, v2")
    a("v_lshlrev_b32 v1, 7, v1")
    a(f"v_and_b32 v2, 3, v{vL}")
    a("v_lshl_add_u32 v1, v2, 3, v1")
    a(f"v_add_u32 v1, s{sLB}, v1")
    a(f"v_bfe_u32 v2, v{vL}, 4, 1")
    a(f"v_bfe_u32 v5, v{vL}, 3, 1")
    a("v_lshl_or_b32 v2, v5, 1, v2")
    a(f"v_lshl_add_u32 v{vAO}, v2, 5, v1")
    a("v_xor_b32 v2, 2, v2")
    a(f"v_lshl_add_u32 v{vAO+1}, v2, 5, v1")


def wo_issue(a, n, slotq):
    a(f"s_add_u32 m0, s{sLB}, {slotq*4096}")
    a(f"s_mov_b32 s{sT0}, {n*32768}")
    for i in range(4):
        a.op(f"buffer_load_dwordx4 v{vO+i}, s[{SWO}:{SWO+3}], s{sT0} offen offset:{1024*i} lds", f"o{n}")


def wo_read(a, n, slotq):
    for k in range(2):
        kap = 2 * n + k
        for nt in range(2):
            for rd in range(2):
                a(f"ds_read_b64_tr_b16 {ar(8*kap+4*nt+2*rd,2)}, v{vAO+nt} offset:{slotq*4096 + k*2048 + rd*1024}")


ST, GF, PF, SEL, OACC, JF = 64, 16, 128, 160, 168, 200


def s4(a):
    o = a.opt
    a(f"v_lshlrev_b32 v1, 4, v{vL}")
    a(f"s_mov_b32 s{sHO}, {F1_OFF}")
    chk_txt = f"buffer_load_dwordx4 v[4:7], v1, s[{SWS}:{SWS+3}], s{sHO} offen sc1"
    a.op(chk_txt, "chk")
    nxt = o.nb
    free = [q for q in range(10) if q >= o.nb]
    inflight = [(n, n) for n in range(o.nb)]
    while free and nxt < 16:
        s = free.pop(0)
        wo_issue(a, nxt, s)
        inflight.append((nxt, s))
        nxt += 1
    prev = None
    for _ in range(o.nb):
        n, s = inflight.pop(0)
        wo_read(a, n, s)
        if prev is not None and nxt < 16:
            a.lgkm(8)
            wo_issue(a, nxt, prev)
            inflight.append((nxt, prev))
            nxt += 1
        prev = s
    assert nxt == 16 or o.nb < 6
    a(f"v_bfe_u32 v2, v{vL}, 3, 2")
    a(f"v_and_b32 v3, 7, v{vL}")
    a("v_mov_b32 v8, 0x3f80")
    a("v_mov_b32 v9, 0x3f800000")
    a("v_mov_b32 v10, 0")
    for q in range(2):
        a(f"v_cmp_eq_u32 vcc, {2*q}, v2")
        a(f"v_cndmask_b32 v11, v10, v8, vcc")
        a(f"v_cmp_eq_u32 vcc, {2*q+1}, v2")
        a(f"v_cndmask_b32 v{SEL+q}, v11, v9, vcc")
        a(f"v_mov_b32 v{SEL+q+2}, v{SEL+q}")
    for q in range(4):
        a(f"v_cmp_eq_u32 vcc, {2*q}, v3")
        a(f"v_cndmask_b32 v11, v10, v8, vcc")
        a(f"v_cmp_eq_u32 vcc, {2*q+1}, v3")
        a(f"v_cndmask_b32 v{SEL+4+q}, v11, v9, vcc")
    poll(a, chk_txt, [4, 5, 6, 7], first_tag="chk")
    Ls = a.newlabel("Le")
    a(f"s_or_b32 s{sT1}, s2, s{sW}")
    a(f"s_cmp_lg_u32 s{sT1}, 0")
    a(f"s_cbranch_scc1 {Ls}")
    a("v_mov_b32 v1, 0")
    a(f"s_mov_b32 s{sT1}, {E_OFF}")
    a("s_mov_b64 exec, 1")
    a(f"buffer_store_dword v{vT}, v1, s[{SWS}:{SWS+3}], s{sT1} offen sc1")
    a("s_mov_b64 exec, -1")
    a.label(Ls)
    a(f"v_lshrrev_b32 v1, 5, v{vL}")
    a(f"v_bfe_u32 v2, v{vL}, 4, 1")
    a(f"v_and_b32 v3, 15, v{vL}")
    a("v_lshl_add_u32 v2, v2, 5, v3")
    a(f"s_lshl_b32 s{sT1}, s{sW}, 7")
    a(f"v_add_u32 v2, s{sT1}, v2")
    a("v_lshlrev_b32 v2, 4, v2")
    a("v_lshl_add_u32 v2, v1, 14, v2")
    a(f"s_lshl_b32 s{sT1}, s{sB}, 13")
    a(f"s_add_u32 s{sT1}, s{sT1}, {G_OFF}")
    a(f"s_add_u32 s{sT2}, s{sT1}, 32768")
    for phi in range(4):
        blk, ab = divmod(phi, 2)
        for s in range(2):
            a.op(f"buffer_load_dwordx4 {vr(GF+(phi*2+s)*4,4)}, v2, s[{SWS}:{SWS+3}], s{sT1 if s == 0 else sT2} offen offset:{blk*1024+ab*256} sc1", f"g{phi}")
    a(f"v_and_b32 v4, 7, v{vL}")
    a(f"s_lshl_b32 s{sT1}, s{sB}, 4")
    a(f"s_lshr_b32 s{sT2}, s{sTT4}, 2")
    a(f"s_add_u32 s{sT1}, s{sT1}, s{sT2}")
    a(f"s_lshl_b32 s{sT1}, s{sT1}, 3")
    a(f"v_add_u32 v4, s{sT1}, v4")
    a("v_lshlrev_b32 v4, 2, v4")
    a(f"s_mov_b32 s{sHO}, {F3_OFF}")
    poll_txt = f"buffer_load_dword v5, v4, s[{SWS}:{SWS+3}], s{sHO} offen sc1"
    issued_poll = False
    if nxt == 16:
        a.op(poll_txt, "poll3")
        issued_poll = True
    prev = None
    while inflight:
        n, s = inflight.pop(0)
        a.vm_wait(f"o{n}")
        wo_read(a, n, s)
        if prev is not None and nxt < 16:
            a.lgkm(8)
            wo_issue(a, nxt, prev)
            inflight.append((nxt, prev))
            nxt += 1
        prev = s
        if nxt == 16 and not issued_poll:
            a.op(poll_txt, "poll3")
            issued_poll = True
    for phi in range(4):
        a.vm_wait(f"g{phi}")
        for s in range(2):
            c = "0" if s == 0 else vr(ST + 16 * phi, 16)
            a(f"v_mfma_f32_32x32x16_bf16 {vr(ST+16*phi,16)}, {vr(GF+(phi*2+s)*4,4)}, {vr(SEL+4,4)}, {c}")
    a(f"v_lshrrev_b32 v1, 5, v{vL}")
    a("v_lshlrev_b32 v1, 13, v1")
    a(f"v_and_b32 v2, 31, v{vL}")
    a("v_lshl_add_u32 v1, v2, 4, v1")
    a(f"s_lshl_b32 s{sT1}, s{sW}, 10")
    a(f"v_add_u32 v1, s{sT1}, v1")
    a(f"s_lshl_b32 s{sT1}, s{sB}, 6")
    a(f"s_add_u32 s{sT1}, s{sT1}, s{sTT4}")
    a(f"s_lshl_b32 s{sT1}, s{sT1}, 15")
    a(f"s_add_u32 s{sT1}, s{sT1}, {P_OFF}")
    a(f"s_add_u32 s{sT2}, s{sT1}, 4096")
    a(f"s_add_u32 s{sT3}, s{sT1}, {4*4096}")
    a(f"s_add_u32 s{sT4}, s{sT1}, {5*4096}")
    a(f"v_lshlrev_b32 v7, 4, v{vL}")
    a(f"v_add_u32 v6, s{sLB}, v7")
    a(f"v_add_u32 v8, {2*RING}, v7")
    a(f"v_and_b32 v2, 31, v{vL}")
    a("v_lshlrev_b32 v9, 7, v2")
    a(f"v_lshrrev_b32 v3, 5, v{vL}")
    a("v_lshl_add_u32 v9, v3, 3, v9")
    a(f"s_add_u32 s{sT5}, s{sLB}, 8192")
    a(f"v_add_u32 v9, s{sT5}, v9")
    a("v_and_b32 v12, 7, v2")
    a(f"v_lshrrev_b32 v2, 3, v{vL}")
    a(f"v_and_b32 v3, 7, v{vL}")
    a("v_xor_b32 v10, v2, v3")
    a("v_lshlrev_b32 v10, 4, v10")
    a("v_lshl_add_u32 v10, v2, 7, v10")
    a(f"v_add_u32 v10, s{sT5}, v10")
    a("v_lshlrev_b32 v11, 4, v3")
    a("v_lshl_add_u32 v11, v2, 10, v11")
    a(f"s_lshl_b32 s{sT5}, s{sW}, 7")
    a(f"v_add_u32 v11, s{sT5}, v11")
    a.lgkm(0)
    a.stamp()
    poll(a, poll_txt, [5], first_tag="poll3")
    a.stamp()
    for blk in range(2):
        for s in range(2):
            for j in range(2):
                so = [sT1, sT2, sT3, sT4][2 * s + j]
                a.op(f"buffer_load_dwordx4 {vr(PF+((blk*2+s)*2+j)*4,4)}, v1, s[{SWS}:{SWS+3}], s{so} offen offset:{blk*512} sc1", f"p{blk}{s}")
    for blk in range(2):
        for s in range(2):
            a.vm_wait(f"p{blk}{s}")
            r = PF + (blk * 2 + s) * 8
            a(f"v_swap_b32 v{r+2}, v{r+4}")
            a(f"v_swap_b32 v{r+3}, v{r+5}")
            for ab in range(2):
                phi = 2 * blk + ab
                a(f"v_mfma_f32_32x32x16_bf16 {vr(ST+16*phi,16)}, {vr(r+4*ab,4)}, {vr(SEL,4)}, {vr(ST+16*phi,16)}")
    a.stamp()

    def tanh_ops(phi):
        ops = []
        base = ST + 16 * phi
        for g in range(4):
            xs = [base + 4 * g + r for r in range(4)]
            ops += [f"v_exp_f32 v{x}, v{x}" for x in xs]
            ops += [f"v_add_f32 v{x}, 1.0, v{x}" for x in xs]
            ops += [f"v_rcp_f32 v{x}, v{x}" for x in xs]
            ops += [f"v_fma_f32 v{x}, v{x}, -2.0, 1.0" for x in xs]
            ops += [f"v_cvt_pk_bf16_f32 v{PF+2*g}, v{xs[0]}, v{xs[1]}",
                    f"v_cvt_pk_bf16_f32 v{PF+2*g+1}, v{xs[2]}, v{xs[3]}"]
        return ops

    def publish(phi):
        for sp in range(2):
            a(f"ds_write_b128 v6, {vr(PF+4*sp,4)} offset:{(2*phi+sp)*1024}")
        a.lgkm(0)
        a("s_barrier")
        for wp in range(4):
            for sp in range(2):
                a(f"ds_read_b128 {vr(JF+(wp*2+sp)*4,4)}, v{7 + (wp >> 1)} offset:{(wp & 1)*RING + (2*phi+sp)*1024}")

    def mm(phi):
        blk, ab = divmod(phi, 2)
        ops = []
        for wp in range(4):
            for sp in range(2):
                kap = 8 * wp + 4 * blk + 2 * sp + ab
                for nt in range(2):
                    first = (phi == 0 and wp == 0 and sp == 0)
                    c = "0" if first else vr(OACC + 16 * nt, 16)
                    ops.append((wp * 2 + sp, f"v_mfma_f32_32x32x16_bf16 {vr(OACC+16*nt,16)}, {ar(8*kap+4*nt,4)}, {vr(JF+(wp*2+sp)*4,4)}, {c}"))
        return ops

    for x in tanh_ops(0):
        a(x)
    for phi in range(4):
        publish(phi)
        ms = mm(phi)
        ts = tanh_ops(phi + 1) if phi < 3 else []
        per = (len(ts) + len(ms) - 1) // len(ms) if ts else 0
        waited = -1
        ti = 0
        for (fr, m) in ms:
            for _ in range(per):
                if ti < len(ts):
                    a(ts[ti]); ti += 1
            if fr > waited:
                a.lgkm(7 - fr)
                waited = fr
            a(m)
        while ti < len(ts):
            a(ts[ti]); ti += 1
    a.stamp()
    for nt in range(2):
        for q in range(4):
            r = OACC + 16 * nt + 4 * q
            d = 16 + (nt * 4 + q) * 2
            a(f"v_cvt_pk_bf16_f32 v{d}, v{r}, v{r+1}")
            a(f"v_cvt_pk_bf16_f32 v{d+1}, v{r+2}, v{r+3}")
            a(f"v_xor_b32 v13, {4*nt+q}, v12")
            a("v_lshl_add_u32 v13, v13, 4, v9")
            a(f"ds_write_b64 v13, {vr(d,2)}")
    a.lgkm(0)
    for rd in range(4):
        a(f"ds_read_b128 {vr(32+4*rd,4)}, v10 offset:{rd*1024}")
    a(f"s_lshl_b32 s{sT1}, s{sTT4}, 15")
    a(f"s_lshl_b32 s{sT2}, s{sNH}, 9")
    a(f"s_add_u32 s{sT1}, s{sT1}, s{sT2}")
    for rd in range(4):
        a.lgkm(3 - rd)
        a(f"s_add_u32 s{sT2}, s{sT1}, {rd*8192}")
        a.op(f"buffer_store_dwordx4 {vr(32+4*rd,4)}, v11, s[{SOUT}:{SOUT+3}], s{sT2} offen", "out")
    a.stamp()


def write_stamps(a):
    if not a.opt.stamps:
        return
    a("s_waitcnt vmcnt(0)")
    a.stamp()
    a(f"s_lshl_b32 s{sT1}, s2, 2")
    a(f"s_add_u32 s{sT1}, s{sT1}, s{sW}")
    a(f"s_lshl_b32 s{sT1}, s{sT1}, 7")
    a(f"s_add_u32 s{sT1}, s{sT1}, {STAMP_OFF}")
    a(f"s_add_u32 s4, s{PWS}, s{sT1}")
    a(f"s_addc_u32 s5, s{PWS+1}, 0")
    a("s_mov_b32 s6, 128")
    a("s_mov_b32 s7, 0x00020000")
    a(f"v_lshlrev_b32 v1, 2, v{vL}")
    a(f"buffer_store_dword v{vSTAMP}, v1, s[4:7], 0 offen")
    a("s_waitcnt vmcnt(0)")


def build(opt):
    a = G(opt)
    a.lines.append(f".globl {NAME}")
    a.lines.append(".p2align 8")
    a.lines.append(f".type {NAME},@function")
    a.lines.append(f"{NAME}:")
    if opt.stamps:
        a(f"v_mov_b32 v{vSTAMP}, 0")
        a.stamp()
    prologue(a)
    qs = QuadStream(a)
    s1(a, qs)
    if opt.stop > 1:
        s2(a, qs)
    if opt.stop > 2:
        s4(a)
    write_stamps(a)
    a.label("Lexit")
    a("s_endpgm")
    a.label("Lcode_end")
    lines, added = hazard.fix(a.lines)
    txt = HEADER_COMMENT + f"; @launch grid=(256,1,1) block=(256,1,1) lds=163840\n"
    txt += '.amdgcn_target "amdgcn-amd-amdhsa--gfx950"\n.text\n' + "\n".join(lines) + "\n"
    txt += '.section .rodata,"a"\n.p2align 6\n' + descriptor(NAME, 512, 102, 256)
    return txt, added, a.nstamp


def parse(argv=None):
    ap = argparse.ArgumentParser()
    ap.add_argument("out")
    ap.add_argument("--stamps", type=int, default=0)
    ap.add_argument("--stop", type=int, default=3)
    ap.add_argument("--na", type=int, default=4)
    ap.add_argument("--nb", type=int, default=8)
    ap.add_argument("--rot1", type=int, default=1)
    ap.add_argument("--rot2", type=int, default=1)
    return ap.parse_args(argv)


if __name__ == "__main__":
    opt = parse()
    txt, added, ns = build(opt)
    open(opt.out, "w").write(txt)
    print(f"wrote {opt.out}: {txt.count(chr(10))} lines, {added} hazard wait states, {ns} stamps")
```

```python
import sys, argparse
from asmlib import Asm, HEADER_COMMENT, descriptor, f32
import hazard

NAME = "standalone__seq2seq_rnn_t_joint__speech_kernel"

GC1 = -2.0 * 1.4426950408889634 * 0.7978845608028654
GC2 = GC1 * 0.044715
TC = 2.0 * 1.4426950408889634

H_OFF, P_OFF, G_OFF, FL_OFF = 0x000000, 0x100000, 0x500000, 0x520000
E_OFF, F1_OFF, F3_OFF = FL_OFF, FL_OFF + 0x400, FL_OFF + 0x800
WS_BYTES = 0x530000
STAMP_OFF = 0x8000000
OOB = 0x40000000
RING = 40960
SPIN = 1 << 15

SX, SW1, SW2, SWF, SWO, SWS, SOUT, SGG, SWG, SC = 4, 8, 12, 16, 20, 24, 28, 32, 36, 40
sW, sXCD, sIDX, sB, sMT1, sNT1, sDS, sMT2, sNH, sTT4, sLB = 44, 45, 46, 47, 48, 49, 50, 51, 52, 53, 54
sROT, sSPIN = 55, 56
sT0, sT1, sT2, sT3, sT4, sT5 = 57, 58, 59, 60, 61, 62
sWI = 63
PX, PW1, PW2, PG, PWF, PWG, PWO, POUT, PDBG, PWS = 64, 66, 68, 70, 72, 74, 76, 78, 80, 82
sC2, sTC, sOOB, sXI, sXJ, sHO = 84, 85, 86, 87, 88, 89
sST = 90
sROT2 = 92
sM0 = 94

vL, vT, vSTAMP, vC1 = 0, 254, 253, 252


class G(Asm):
    def __init__(self, opt):
        super().__init__()
        self.opt = opt
        self.vm = []
        self.nstamp = 0

    def op(self, text, tag):
        self(text)
        self.vm.append(tag)

    def vm_wait(self, tag):
        idx = max(i for i, t in enumerate(self.vm) if t == tag)
        n = len(self.vm) - 1 - idx
        self(f"s_waitcnt vmcnt({min(n, 63)})")

    def vm_all(self):
        self("s_waitcnt vmcnt(0)")

    def lgkm(self, n):
        self(f"s_waitcnt lgkmcnt({n})")

    def stamp(self):
        n = self.nstamp
        self.nstamp += 1
        if self.opt.amp >= 0:
            if n == 0:
                self("s_memrealtime s[96:97]")
            if n == self.opt.amp:
                self("s_memrealtime s[98:99]")
        if not self.opt.stamps:
            return
        self(f"s_memrealtime s[{sST}:{sST+1}]")
        self("s_waitcnt lgkmcnt(0)")
        self(f"v_writelane_b32 v{vSTAMP}, s{sST}, {n}")

    def srd(self, d, ptr, off_sgpr, nbytes):
        if off_sgpr is None:
            self(f"s_mov_b32 s{d}, s{ptr}")
            self(f"s_mov_b32 s{d+1}, s{ptr+1}")
        else:
            self(f"s_add_u32 s{d}, s{ptr}, s{off_sgpr}")
            self(f"s_addc_u32 s{d+1}, s{ptr+1}, 0")
        self(f"s_mov_b32 s{d+2}, {nbytes}")
        self(f"s_mov_b32 s{d+3}, 0x00020000")


def vr(b, n=1):
    return f"v{b}" if n == 1 else f"v[{b}:{b+n-1}]"


def ar(b, n=1):
    return f"a{b}" if n == 1 else f"a[{b}:{b+n-1}]"


def gelu_group(a, xs, t1, t2, scale=None):
    for x, t in zip(xs, t1):
        a(f"v_mul_f32 v{t}, v{x}, v{x}")
    for t in t1:
        a(f"v_fma_f32 v{t}, v{t}, s{sC2}, v{vC1}")
    for x, t in zip(xs, t1):
        a(f"v_mul_f32 v{t}, v{t}, v{x}")
    for t in t1:
        a(f"v_exp_f32 v{t}, v{t}")
    if scale is not None:
        for x in xs:
            a(f"v_mul_f32 v{x}, s{scale}, v{x}")
    for t in t1:
        a(f"v_add_f32 v{t}, 1.0, v{t}")
    for t in t1:
        a(f"v_rcp_f32 v{t}, v{t}")
    for x, t in zip(xs, t1):
        a(f"v_mul_f32 v{x}, v{x}, v{t}")


def w_pattern(a, dst, tmp):
    a(f"v_lshrrev_b32 v{tmp}, 2, v{vL}")
    a(f"v_and_b32 v{tmp}, 4, v{tmp}")
    a(f"v_and_b32 v{dst}, 7, v{vL}")
    a(f"v_xor_b32 v{dst}, v{dst}, v{tmp}")
    a(f"v_lshlrev_b32 v{dst}, 4, v{dst}")
    a(f"v_lshrrev_b32 v{tmp}, 3, v{vL}")
    a(f"v_lshl_add_u32 v{dst}, v{tmp}, 10, v{dst}")


def poll(a, load_text, cmp_regs, first_tag=None):
    L = a.newlabel("Lpoll")
    Lok = a.newlabel("Lok")
    if first_tag is None:
        a.op(load_text, "poll")
        first_tag = "poll"
    a.vm_wait(first_tag)

    def compare():
        a(f"v_cmp_ne_u32 vcc, v{vT}, v{cmp_regs[0]}")
        for r in cmp_regs[1:]:
            a(f"v_cmp_ne_u32 s[{sM0}:{sM0+1}], v{vT}, v{r}")
            a(f"s_or_b64 vcc, vcc, s[{sM0}:{sM0+1}]")
    compare()
    a(f"s_cbranch_vccz {Lok}")
    a(f"s_mov_b32 s{sSPIN}, {SPIN}")
    a.label(L)
    a(load_text)
    a("s_waitcnt vmcnt(0)")
    compare()
    a(f"s_cbranch_vccz {Lok}")
    a(f"s_sub_u32 s{sSPIN}, s{sSPIN}, 1")
    a(f"s_cmp_lg_u32 s{sSPIN}, 0")
    a(f"s_cbranch_scc1 {L}")
    a.label(Lok)
    a("s_nop 1")


def prologue(a):
    o = a.opt
    a(f"s_cmp_ge_u32 s2, 256")
    a("s_cbranch_scc1 Lexit")
    a("s_load_dwordx16 s[64:79], s[0:1], 0")
    a("s_load_dwordx4 s[80:83], s[0:1], 64")
    a(f"s_getpc_b64 s[{SC}:{SC+1}]")
    a("v_lshrrev_b32 v1, 6, v0")
    a("v_and_b32 v0, 63, v0")
    a(f"v_readfirstlane_b32 s{sW}, v1")
    a(f"s_and_b32 s{sXCD}, s2, 7")
    a(f"s_lshr_b32 s{sIDX}, s2, 3")
    a(f"s_lshr_b32 s{sB}, s{sXCD}, 2")
    a(f"s_bfe_u32 s{sMT1}, s{sXCD}, 0x10001")
    a(f"s_lshl_b32 s{sMT1}, s{sMT1}, 3")
    a(f"s_lshr_b32 s{sROT}, s{sIDX}, 2")
    a(f"s_add_u32 s{sMT1}, s{sMT1}, s{sROT}")
    a(f"s_and_b32 s{sNT1}, s{sXCD}, 1")
    a(f"s_lshl_b32 s{sNT1}, s{sNT1}, 2")
    a(f"s_and_b32 s{sT0}, s{sIDX}, 3")
    a(f"s_add_u32 s{sNT1}, s{sNT1}, s{sT0}")
    a(f"s_mul_i32 s{sLB}, s{sW}, {RING}")
    a(f"s_lshl_b32 s{sXI}, s{sT0}, 14")
    a(f"s_mov_b32 s{sOOB}, {OOB}")
    if not o.rot1:
        a(f"s_mov_b32 s{sROT}, 0")
        a(f"s_mov_b32 s{sXI}, 0")
    a(f"s_and_b32 s{SC}, s{SC}, 0xffffff00")
    a(f"s_mov_b32 s{SC+2}, Lcode_end-{NAME}")
    a(f"s_mov_b32 s{SC+3}, 0x00020000")
    a(f"s_lshl_b32 s{sT1}, s{sIDX}, 3")
    a(f"s_lshl_b32 s{sT2}, s{sW}, 1")
    a(f"s_add_u32 s{sT1}, s{sT1}, s{sT2}")
    a(f"v_add_u32 v2, s{sT1}, v{vL}")
    a("v_lshlrev_b32 v2, 7, v2")
    a(f"v_mov_b32 v3, s{sOOB}")
    a(f"v_cmp_gt_u32 vcc, 2, v{vL}")
    a("v_cndmask_b32 v2, v3, v2, vcc")
    a(f"v_lshrrev_b32 v6, 4, v{vL}")
    a(f"v_and_b32 v7, 15, v{vL}")
    a("v_lshlrev_b32 v7, 4, v7")
    a(f"s_lshl_b32 s{sT1}, s{sW}, 8")
    a(f"v_add_u32 v7, s{sT1}, v7")
    a("v_lshl_add_u32 v4, v6, 10, v7")
    a("v_add_u32 v4, 1024, v4")
    a(f"s_cmp_lg_u32 s{sMT1}, 0")
    a(f"s_cselect_b32 s{sT2}, 48, 64")
    a(f"v_cmp_le_u32 vcc, s{sT2}, v{vL}")
    a("v_cndmask_b32 v5, v3, v7, vcc")
    w_pattern(a, 8, 6)
    a(f"s_lshl_b32 s{sT1}, s{sW}, 17")
    a(f"v_add_u32 v8, s{sT1}, v8")
    a("v_add_u32 v9, 7168, v8")
    a("v_mov_b32 v10, 0")
    a(f"s_mul_i32 s{sT3}, s{sB}, 1024000")
    a(f"s_lshl_b32 s{sT4}, s{sMT1}, 16")
    a(f"s_add_u32 s{sT3}, s{sT3}, s{sT4}")
    a(f"s_sub_u32 s{SX+2}, {1024000+1024}, s{sT4}")
    a(f"s_mov_b32 s{SX+3}, 0x00020000")
    a(f"s_lshl_b32 s{sT5}, s{sNT1}, 7")
    a(f"s_sub_u32 s{SW1+2}, 1572864, s{sT5}")
    a(f"s_mov_b32 s{SW1+3}, 0x00020000")
    a(f"s_mov_b32 s{SWS+2}, {WS_BYTES}")
    a(f"s_mov_b32 s{SWS+3}, 0x00020000")
    a(f"s_lshl_b32 s{sWI}, s{sROT}, 14")
    a.op(f"buffer_load_dword v11, v2, s[{SC}:{SC+3}], 0 offen", "code")
    a("s_waitcnt lgkmcnt(0)")
    a.stamp()
    a(f"s_add_u32 s{SX}, s{PX}, s{sT3}")
    a(f"s_addc_u32 s{SX+1}, s{PX+1}, 0")
    a(f"s_sub_u32 s{SX}, s{SX}, 1024")
    a(f"s_subb_u32 s{SX+1}, s{SX+1}, 0")
    a(f"s_mov_b32 m0, s{sLB}")
    a(f"s_add_u32 s{SW1}, s{PW1}, s{sT5}")
    a.op(f"buffer_load_dwordx4 v5, s[{SX}:{SX+3}], 0 offen lds", "X")
    a(f"s_addc_u32 s{SW1+1}, s{PW1+1}, 0")
    a(f"s_add_u32 s{sT4}, s{sLB}, 1024")
    cur, nxt = sXI, sXJ
    for n in range(16):
        a(f"s_add_u32 s{nxt}, s{cur}, 4096")
        a(f"s_and_b32 s{nxt}, s{nxt}, 0xffff")
        a(f"s_lshr_b32 s{sT0}, s{nxt}, 8")
        a(f"v_xor_b32 v{6 + (n & 1)}, s{sT0}, v4")
        a(f"s_lshr_b32 s{sT1}, s{cur}, 2")
        a(f"s_add_u32 m0, s{sT4}, s{sT1}")
        a("s_nop 0")
        a.op(f"buffer_load_dwordx4 v{6 + (n & 1)}, s[{SX}:{SX+3}], s{cur} offen lds", "X")
        cur, nxt = nxt, cur
    a(f"s_mov_b32 s{SWS}, s{PWS}")
    a(f"s_mov_b32 s{SWS+1}, s{PWS+1}")


W1_SLOT = [18 + 2 * j for j in range(11)] + [2 * j for j in range(9)] + [18 + 2 * j for j in range(4)]


def w1_issue(a, j):
    jc, tau = divmod(j, 3)
    if tau == 0 and jc > 0:
        a(f"s_add_u32 s{sWI}, s{sWI}, 16384")
        a(f"s_and_b32 s{sWI}, s{sWI}, 0x1ffff")
    a(f"s_add_u32 m0, s{sLB}, {W1_SLOT[j]*1024}")
    if tau:
        a(f"s_add_u32 s{sT0}, s{sWI}, {tau*524288}")
        so = sT0
    else:
        a("s_nop 0")
        so = sWI
    a.op(f"buffer_load_dwordx4 v8, s[{SW1}:{SW1+3}], s{so} offen lds", f"w1_{j}")
    a.op(f"buffer_load_dwordx4 v9, s[{SW1}:{SW1+3}], s{so} offen offset:1024 lds", f"w1_{j}")


vQ = 232
vQF = 236
vA2 = 240


def quad_setup(a):
    w_pattern(a, vQ, 1)
    a(f"v_xor_b32 v{vQ+1}, 32, v{vQ}")
    a(f"v_add_u32 v{vQ+1}, 7168, v{vQ+1}")
    a(f"v_add_u32 v{vQ+2}, {2*7168}, v{vQ}")
    a(f"v_add_u32 v{vQ+3}, {2*7168}, v{vQ+1}")
    a(f"s_lshl_b32 s{sT0}, s{sW}, 8")
    a(f"s_lshl_b32 s{sT1}, s{sW}, 17")
    for i in range(4):
        a(f"v_add_u32 v{vQF+i}, s{sT0}, v{vQ+i}")
    for i in range(4):
        a(f"v_add_u32 v{vQ+i}, s{sT1}, v{vQ+i}")
    a(f"v_lshrrev_b32 v1, 4, v{vL}")
    a(f"v_bfe_u32 v2, v{vL}, 2, 2")
    a("v_lshlrev_b32 v2, 7, v2")
    a("v_lshl_add_u32 v2, v1, 10, v2")
    a(f"v_and_b32 v3, 3, v{vL}")
    a("v_lshl_add_u32 v2, v3, 3, v2")
    a(f"v_add_u32 v2, s{sLB}, v2")
    a(f"v_bfe_u32 v3, v{vL}, 3, 1")
    a("v_lshlrev_b32 v3, 1, v3")
    a("v_and_b32 v1, 1, v1")
    a("v_or_b32 v3, v3, v1")
    for nt in range(4):
        a(f"v_xor_b32 v1, {nt}, v3")
        a(f"v_lshl_add_u32 v{vA2+nt}, v1, 5, v2")


def quad_issue(a, q, slotq):
    a(f"s_add_u32 m0, s{sLB}, {slotq*4096}")
    if q < 12:
        jc, tau = divmod(q, 3)
        if tau == 0:
            if jc > 0:
                a(f"s_add_u32 s{sWI}, s{sWI}, 32768")
                a(f"s_and_b32 s{sWI}, s{sWI}, 0x1ffff")
            else:
                a(f"s_lshl_b32 s{sWI}, s{sROT2}, 15")
            so = sWI
        else:
            a(f"s_add_u32 s{sT0}, s{sWI}, {tau*524288}")
            so = sT0
        for i in range(4):
            a.op(f"buffer_load_dwordx4 v{vQ+i}, s[{SW2}:{SW2+3}], s{so} offen offset:{1024*i} lds", f"q{q}")
    else:
        half, ks = divmod(q - 12, 2)
        a(f"s_mov_b32 s{sT0}, {ks*32768 + half*128}")
        for i in range(4):
            a.op(f"buffer_load_dwordx4 v{vQF+i}, s[{SWF}:{SWF+3}], s{sT0} offen offset:{1024*i} lds", f"q{q}")


def quad_read(a, q, slotq):
    for nt in range(4):
        if q < 12:
            d = (q * 4 + nt) * 4
        else:
            half, ks = divmod(q - 12, 2)
            d = 192 + ((half * 4 + nt) * 2 + ks) * 4
        a(f"ds_read_b64_tr_b16 {ar(d,2)}, v{vA2+nt} offset:{slotq*4096}")
        a(f"ds_read_b64_tr_b16 {ar(d+2,2)}, v{vA2+nt} offset:{slotq*4096+512}")


class QuadStream:
    def __init__(self, a):
        self.a = a
        self.next = 0
        self.inflight = []

    def issue(self, slotq):
        quad_issue(self.a, self.next, slotq)
        self.inflight.append((self.next, slotq))
        self.next += 1


XF, WB, ACC = 16, 112, 128
vGA, vGB, vGD = 160, 164, 168


def s1(a, qs):
    o = a.opt
    a(f"s_mov_b32 s{sT1}, {E_OFF}")
    a.op(f"buffer_load_dword v{vT}, v10, s[{SWS}:{SWS+3}], s{sT1} offen sc1", "E")
    for j in range(11):
        w1_issue(a, j)
    a.stamp()
    a(f"s_and_b32 s{sDS}, s{sXCD}, 3")
    a(f"s_lshl_b32 s{sDS}, s{sDS}, 1")
    a(f"s_and_b32 s{sNH}, s{sIDX}, 1")
    a(f"s_add_u32 s{sDS}, s{sDS}, s{sNH}")
    a(f"s_lshr_b32 s{sMT2}, s{sIDX}, 1")
    a(f"s_and_b32 s{sTT4}, s{sXCD}, 3")
    a(f"s_lshl_b32 s{sTT4}, s{sTT4}, 4")
    a(f"s_add_u32 s{sTT4}, s{sTT4}, s{sMT2}")
    a(f"s_and_b32 s{sROT2}, s{sMT2}, 3")
    if not o.rot2:
        a(f"s_mov_b32 s{sROT2}, 0")
    a(f"s_lshl_b32 s{sT1}, s{sDS}, 7")
    a.srd(SW2, PW2, sT1, 0)
    a(f"s_sub_u32 s{SW2+2}, 1572864, s{sT1}")
    a(f"s_lshl_b32 s{sT1}, s{sDS}, 16")
    a.srd(SWF, PWF, sT1, 65536)
    a(f"s_lshl_b32 s{sT1}, s{sNH}, 9")
    a.srd(SWO, PWO, sT1, 0)
    a(f"s_sub_u32 s{SWO+2}, 524288, s{sT1}")
    a(f"s_mul_i32 s{sT1}, s{sB}, 2048000")
    a.srd(SOUT, POUT, sT1, 2048000)
    a.srd(SGG, PG, None, 16384)
    a.srd(SWG, PWG, None, 524288)
    a(f"s_mov_b32 s{sC2}, {f32(GC2)}")
    a(f"s_mov_b32 s{sTC}, {f32(TC)}")
    a(f"v_mov_b32 v{vC1}, {f32(GC1)}")
    a(f"v_and_b32 v1, 15, v{vL}")
    a("v_lshlrev_b32 v1, 2, v1")
    a(f"v_bfe_u32 v2, v{vL}, 4, 1")
    a("v_lshl_add_u32 v1, v2, 1, v1")
    a("v_add_u32 v1, 3, v1")
    a(f"v_lshrrev_b32 v2, 5, v{vL}")
    for tau in range(3):
        a(f"v_add_u32 v3, {tau}, v1")
        a("v_bfe_u32 v6, v3, 2, 4")
        a("v_xor_b32 v6, v6, v2")
        a("v_lshlrev_b32 v6, 4, v6")
        a("v_lshl_add_u32 v6, v3, 8, v6")
        a(f"v_add_u32 v{12+tau}, s{sLB}, v6")
    a(f"v_bfe_u32 v1, v{vL}, 2, 2")
    a("v_lshlrev_b32 v1, 7, v1")
    a("v_lshl_add_u32 v1, v2, 10, v1")
    a(f"v_and_b32 v3, 3, v{vL}")
    a("v_lshl_add_u32 v1, v3, 3, v1")
    a(f"v_add_u32 v1, s{sLB}, v1")
    a(f"v_bfe_u32 v3, v{vL}, 4, 1")
    a(f"v_bfe_u32 v6, v{vL}, 3, 1")
    a("v_lshl_or_b32 v3, v6, 1, v3")
    a("v_lshl_add_u32 v4, v3, 5, v1")
    a("v_xor_b32 v3, 2, v3")
    a("v_lshl_add_u32 v5, v3, 5, v1")
    quad_setup(a)
    a(f"s_lshr_b32 s{sT1}, s{sIDX}, 3")
    a(f"s_and_b32 s{sT2}, s{sIDX}, 7")
    a(f"s_lshl_b32 s{sT3}, s{sXCD}, 3")
    a(f"s_add_u32 s{sT2}, s{sT2}, s{sT3}")
    a(f"s_lshl_b32 s{sT3}, s{sT1}, 7")
    a(f"s_lshl_b32 s{sT4}, s{sW}, 5")
    a(f"s_add_u32 s{sT3}, s{sT3}, s{sT4}")
    a(f"v_and_b32 v1, 31, v{vL}")
    a(f"v_add_u32 v1, s{sT3}, v1")
    a("v_lshlrev_b32 v1, 10, v1")
    a(f"s_lshl_b32 s{sT4}, s{sT2}, 4")
    a(f"v_add_u32 v15, s{sT4}, v1")
    a(f"v_and_b32 v1, 15, v{vL}")
    a("v_lshlrev_b32 v1, 10, v1")
    a(f"v_lshrrev_b32 v3, 4, v{vL}")
    a("v_lshl_add_u32 v1, v3, 4, v1")
    a(f"s_lshl_b32 s{sT3}, s{sT3}, 1")
    a(f"v_add_u32 v244, s{sT3}, v1")
    a("v_lshlrev_b32 v1, 7, v3")
    a(f"v_bfe_u32 v3, v{vL}, 2, 2")
    a("v_lshl_add_u32 v1, v3, 4, v1")
    a(f"v_and_b32 v3, 1, v{vL}")
    a("v_lshl_add_u32 v1, v3, 3, v1")
    a(f"s_add_u32 s{sT3}, s{sLB}, {26*1024}")
    a(f"v_add_u32 v245, s{sT3}, v1")
    a(f"s_lshl_b32 s{sT1}, s{sT1}, 14")
    a(f"s_lshl_b32 s{sT2}, s{sT2}, 7")
    a(f"s_add_u32 s{sT1}, s{sT1}, s{sT2}")
    a(f"s_add_u32 s93, s{sT1}, {G_OFF}")
    a(f"v_lshrrev_b32 v1, 5, v{vL}")
    a("v_lshlrev_b32 v1, 13, v1")
    a(f"v_and_b32 v3, 15, v{vL}")
    a("v_lshl_add_u32 v1, v3, 4, v1")
    a(f"v_bfe_u32 v6, v{vL}, 4, 1")
    a("v_lshl_add_u32 v1, v6, 3, v1")
    a(f"s_cmp_eq_u32 s{sW}, 0")
    a(f"s_cselect_b32 s{sT2}, 8, 0")
    a(f"v_cmp_gt_u32 vcc, s{sT2}, v3")
    a(f"v_mov_b32 v6, s{sOOB}")
    a("v_cndmask_b32 v246, v6, v1, vcc")
    a.vm_wait("X")
    a.stamp()
    a(f"s_lshl_b32 s{sT1}, s{sROT}, 5")
    for jc in range(8):
        if jc:
            a(f"s_add_u32 s{sT1}, s{sT1}, 32")
            a(f"s_and_b32 s{sT1}, s{sT1}, 0xff")
        for tau in range(3):
            j = 3 * jc + tau
            a(f"v_xor_b32 v{6 + (j & 1)}, s{sT1}, v{12+tau}")
            a(f"ds_read_b128 {vr(XF+4*j,4)}, v{6 + (j & 1)}")
    a.lgkm(0)
    for j in range(11, 20):
        w1_issue(a, j)
    a.vm_wait("E")
    a(f"v_add_u32 v{vT}, 1, v{vT}")
    a(f"v_or_b32 v{vT}, 0x80000000, v{vT}")

    def mfmas(j):
        for nt in range(2):
            c = "0" if j == 0 else vr(ACC + 16 * nt, 16)
            a(f"v_mfma_f32_32x32x16_bf16 {vr(ACC+16*nt,16)}, {vr(WB + 8*(j & 1) + 4*nt, 4)}, {vr(XF+4*j,4)}, {c}")

    w2a_at = {7 + 0: 7, 13: 0, 15: 1, 17: 2, 19: 3}
    na = 0
    for j in range(24):
        a.vm_wait(f"w1_{j}")
        b = WB + 8 * (j & 1)
        so = W1_SLOT[j] * 1024
        for nt in range(2):
            a(f"ds_read_b64_tr_b16 {vr(b+4*nt,2)}, v{4+nt} offset:{so}")
            a(f"ds_read_b64_tr_b16 {vr(b+4*nt+2,2)}, v{4+nt} offset:{so+512}")
        if j > 0:
            a.lgkm(4)
            mfmas(j - 1)
        if 1 <= j <= 4:
            w1_issue(a, 19 + j)
        if j == 5:
            a(f"s_add_u32 m0, s{sLB}, {26*1024}")
            a("s_nop 0")
            a.op(f"buffer_load_dwordx4 v15, s[{SWG}:{SWG+3}], 0 offen lds", "G")
            a.op(f"buffer_load_dwordx4 {vr(vGA,4)}, v244, s[{SGG}:{SGG+3}], 0 offen", "G")
        if j in w2a_at and na < o.na:
            qs.issue(w2a_at[j])
            na += 1
    a.lgkm(0)
    mfmas(23)
    a.vm_wait("G")
    a(f"ds_read_b64_tr_b16 {vr(vGB,2)}, v245")
    a(f"ds_read_b64_tr_b16 {vr(vGB+2,2)}, v245 offset:64")
    a(f"v_lshlrev_b32 v1, 4, v{vL}")
    a(f"s_add_u32 s{sT1}, s{sLB}, 32768")
    a(f"v_add_u32 v2, s{sT1}, v1")
    a(f"v_add_u32 v3, {27*1024}, v1")
    a(f"v_add_u32 v6, {27*1024 + 2*RING}, v1")
    a(f"s_add_u32 s{sT1}, s{sLB}, {27*1024}")
    a(f"v_add_u32 v7, s{sT1}, v1")
    a(f"v_lshrrev_b32 v8, 5, v{vL}")
    a(f"s_lshl_b32 s{sT1}, s{sW}, 1")
    a(f"v_add_u32 v8, s{sT1}, v8")
    a(f"v_and_b32 v9, 31, v{vL}")
    a("v_lshlrev_b32 v9, 4, v9")
    a("v_lshl_add_u32 v9, v8, 10, v9")
    a("v_add_u32 v9, 32768, v9")
    a(f"v_add_u32 v10, {2*RING}, v9")
    a.lgkm(0)
    a(f"v_mfma_f32_16x16x32_bf16 {vr(vGD,4)}, {vr(vGA,4)}, {vr(vGB,4)}, 0")
    for q in range(8):
        a(f"ds_write_b128 v2, {vr(ACC+4*q,4)} offset:{q*1024}")
    a(f"ds_write_b128 v7, {vr(vGD,4)}")
    a.lgkm(0)
    a("s_barrier")
    a.stamp()
    RB = 16
    for wp in range(4):
        for hh in range(2):
            a(f"ds_read_b128 {vr(RB+(wp*2+hh)*4,4)}, v{9 + (wp >> 1)} offset:{(wp & 1)*RING + hh*512}")
    GB = 48
    for wp in range(4):
        a(f"ds_read_b128 {vr(GB+4*wp,4)}, v{3 if wp < 2 else 6} offset:{(wp & 1)*RING}")
    a(f"v_bfe_u32 v11, v{vL}, 4, 1")
    a("v_lshlrev_b32 v11, 18, v11")
    a("v_lshl_add_u32 v11, v8, 12, v11")
    a(f"v_and_b32 v1, 15, v{vL}")
    a("v_lshl_add_u32 v11, v1, 4, v11")
    a(f"s_lshl_b32 s{sT1}, s{sB}, 19")
    a(f"s_lshl_b32 s{sT2}, s{sNT1}, 15")
    a(f"s_add_u32 s{sT1}, s{sT1}, s{sT2}")
    a(f"s_lshl_b32 s{sT2}, s{sMT1}, 8")
    a(f"s_add_u32 s{sHO}, s{sT1}, s{sT2}")
    if H_OFF:
        a(f"s_add_u32 s{sHO}, s{sHO}, {H_OFF}")
    a.lgkm(4)
    X8 = [64 + c for c in range(8)]
    src = lambda wp, c: RB + (wp * 2 + (c >> 2)) * 4 + (c & 3)
    for c in range(8):
        a(f"v_add_f32 v{X8[c]}, v{src(0,c)}, v{src(1,c)}")
    for c in range(8):
        a(f"v_add_f32 v{72+c}, v{src(2,c)}, v{src(3,c)}")
    for c in range(8):
        a(f"v_add_f32 v{X8[c]}, v{X8[c]}, v{72+c}")
    gelu_group(a, X8, [72 + c for c in range(8)], None)
    for c in range(4):
        a(f"v_cvt_pk_bf16_f32 v{80+c}, v{X8[2*c]}, v{X8[2*c+1]}")
    a.op(f"buffer_store_dwordx4 {vr(80,4)}, v11, s[{SWS}:{SWS+3}], s{sHO} offen sc1", "hst")
    a.lgkm(0)
    for r in range(4):
        a(f"v_add_f32 v{84+r}, v{GB+r}, v{GB+4+r}")
        a(f"v_add_f32 v{88+r}, v{GB+8+r}, v{GB+12+r}")
    for r in range(4):
        a(f"v_add_f32 v{84+r}, v{84+r}, v{88+r}")
    for r in range(4):
        a(f"v_mul_f32 v{84+r}, s{sTC}, v{84+r}")
    a("v_cvt_pk_bf16_f32 v88, v84, v85")
    a("v_cvt_pk_bf16_f32 v89, v86, v87")
    a.op(f"buffer_store_dwordx2 v[88:89], v246, s[{SWS}:{SWS+3}], s93 offen sc1", "gst")
    a.vm_all()
    a("s_barrier")
    Ls = a.newlabel("Lf1")
    a(f"s_cmp_lg_u32 s{sW}, 0")
    a(f"s_cbranch_scc1 {Ls}")
    a(f"s_lshl_b32 s{sT1}, s{sB}, 4")
    a(f"s_add_u32 s{sT1}, s{sT1}, s{sMT1}")
    a(f"s_lshl_b32 s{sT1}, s{sT1}, 3")
    a(f"s_add_u32 s{sT1}, s{sT1}, s{sNT1}")
    a(f"s_lshl_b32 s{sT1}, s{sT1}, 2")
    a(f"s_add_u32 s{sT1}, s{sT1}, {F1_OFF}")
    a("v_mov_b32 v1, 0")
    a("s_mov_b64 exec, 1")
    a(f"buffer_store_dword v{vT}, v1, s[{SWS}:{SWS+3}], s{sT1} offen sc1")
    a("s_mov_b64 exec, -1")
    a.label(Ls)
    a.stamp()


HF, ACC2 = 16, 64


def s2(a, qs):
    o = a.opt
    used = {s for (_, s) in qs.inflight}
    free = [q for q in (4, 5, 6, 8, 9, 3, 2, 1, 0, 7) if q not in used]
    TOT = 16
    while free and qs.next < TOT:
        qs.issue(free.pop(0))
    a(f"v_and_b32 v1, 7, v{vL}")
    a(f"v_bfe_u32 v2, v{vL}, 3, 1")
    a(f"s_cmp_eq_u32 s{sMT2}, 0")
    a(f"s_cselect_b32 s{sT1}, 0, 8")
    a("v_xor_b32 v2, 1, v2")
    a(f"v_mul_lo_u32 v2, v2, s{sT1}")
    a("v_sub_u32 v1, v1, v2")
    a(f"s_lshl_b32 s{sT1}, s{sB}, 4")
    a(f"s_add_u32 s{sT1}, s{sT1}, s{sMT2}")
    a(f"s_lshl_b32 s{sT1}, s{sT1}, 3")
    a(f"v_add_u32 v1, s{sT1}, v1")
    a("v_lshlrev_b32 v1, 2, v1")
    a(f"s_mov_b32 s{sHO}, {F1_OFF}")
    poll_txt = f"buffer_load_dword v2, v1, s[{SWS}:{SWS+3}], s{sHO} offen sc1"
    polled = False
    prev = None
    while qs.inflight:
        q, slot = qs.inflight.pop(0)
        a.vm_wait(f"q{q}")
        quad_read(a, q, slot)
        if prev is not None and qs.next < TOT:
            a.lgkm(8)
            qs.issue(prev)
        prev = slot
        if qs.next == TOT and not polled:
            a.op(poll_txt, "poll1")
            polled = True
    a(f"v_and_b32 v5, 15, v{vL}")
    a(f"s_lshl_b32 s{sT1}, s{sMT2}, 4")
    a(f"v_add_u32 v5, s{sT1}, v5")
    a(f"v_lshrrev_b32 v6, 4, v{vL}")
    a("v_lshlrev_b32 v6, 12, v6")
    a("v_lshl_add_u32 v3, v5, 4, v6")
    a(f"s_lshl_b32 s{sT1}, s{sW}, 16")
    a(f"v_add_u32 v3, s{sT1}, v3")
    a("v_subrev_u32 v4, 16, v3")
    a("v_cmp_eq_u32 vcc, 0, v5")
    a(f"v_mov_b32 v6, s{sOOB}")
    a("v_cndmask_b32 v4, v4, v6, vcc")
    a.lgkm(0)
    a.stamp()
    poll(a, poll_txt, [2], first_tag="poll1")
    a.stamp()
    a(f"s_lshl_b32 s{sT1}, s{sB}, 19")
    if H_OFF:
        a(f"s_add_u32 s{sT1}, s{sT1}, {H_OFF}")
    a(f"s_lshl_b32 s{sT2}, s{sROT2}, 14")
    for jc in range(4):
        if jc:
            a(f"s_add_u32 s{sT2}, s{sT2}, 16384")
            a(f"s_and_b32 s{sT2}, s{sT2}, 0xffff")
        a(f"s_add_u32 s{sT3}, s{sT1}, s{sT2}")
        a(f"s_add_u32 s{sT4}, s{sT3}, 262144")
        for tau in range(3):
            j = 3 * jc + tau
            va = 4 if tau == 0 else 3
            so = sT3 if tau == 1 else sT4
            a.op(f"buffer_load_dwordx4 {vr(HF+4*j,4)}, v{va}, s[{SWS}:{SWS+3}], s{so} offen sc1", f"h{j}")
    wo_setup(a)
    for n in range(o.nb):
        wo_issue(a, n, n)
    for j in range(12):
        a.vm_wait(f"h{j}")
        for nt in range(4):
            c = "0" if j == 0 else vr(ACC2 + 4 * nt, 4)
            a(f"v_mfma_f32_16x16x32_bf16 {vr(ACC2+4*nt,4)}, {ar((j*4+nt)*4,4)}, {vr(HF+4*j,4)}, {c}")
    a.stamp()
    a(f"v_lshlrev_b32 v1, 4, v{vL}")
    a(f"s_add_u32 s{sT1}, s{sLB}, 32768")
    a(f"v_add_u32 v2, s{sT1}, v1")
    a(f"s_lshl_b32 s{sT1}, s{sW}, 10")
    a(f"s_add_u32 s{sT1}, s{sT1}, 32768")
    a(f"v_add_u32 v3, s{sT1}, v1")
    a(f"v_add_u32 v4, {2*RING}, v3")
    a(f"v_and_b32 v5, 15, v{vL}")
    a("v_mul_u32_u24 v5, 144, v5")
    a(f"v_lshrrev_b32 v7, 4, v{vL}")
    a("v_lshl_add_u32 v6, v7, 4, v5")
    a("v_add_u32 v6, 36864, v6")
    a("v_lshl_add_u32 v5, v7, 3, v5")
    a(f"s_lshl_b32 s{sT1}, s{sW}, 5")
    a(f"s_add_u32 s{sT1}, s{sT1}, 36864")
    a(f"v_add_u32 v5, s{sT1}, v5")
    for nt in range(4):
        a(f"ds_write_b128 v2, {vr(ACC2+4*nt,4)} offset:{nt*1024}")
    a.lgkm(0)
    a("s_barrier")
    RB = 80
    for wp in range(4):
        a(f"ds_read_b128 {vr(RB+4*wp,4)}, v{3 + (wp >> 1)} offset:{(wp & 1)*RING}")
    a.lgkm(0)
    for r in range(4):
        a(f"v_add_f32 v{96+r}, v{RB+r}, v{RB+4+r}")
        a(f"v_add_f32 v{100+r}, v{RB+8+r}, v{RB+12+r}")
    for r in range(4):
        a(f"v_add_f32 v{96+r}, v{96+r}, v{100+r}")
    gelu_group(a, [96 + r for r in range(4)], [100 + r for r in range(4)], None, scale=sTC)
    a("v_cvt_pk_bf16_f32 v104, v96, v97")
    a("v_cvt_pk_bf16_f32 v105, v98, v99")
    a("ds_write_b64 v5, v[104:105]")
    a.lgkm(0)
    a("s_barrier")
    a("ds_read_b128 v[108:111], v6")
    a("ds_read_b128 v[112:115], v6 offset:64")
    a(f"v_lshrrev_b32 v7, 4, v{vL}")
    a("v_lshlrev_b32 v7, 15, v7")
    a(f"v_and_b32 v8, 15, v{vL}")
    a("v_lshl_add_u32 v7, v8, 4, v7")
    a(f"s_lshl_b32 s{sT1}, s{sW}, 10")
    a(f"v_add_u32 v7, s{sT1}, v7")
    a(f"s_lshl_b32 s{sT1}, s{sB}, 6")
    a(f"s_lshl_b32 s{sT2}, s{sMT2}, 2")
    a(f"s_add_u32 s{sT1}, s{sT1}, s{sT2}")
    a(f"s_lshl_b32 s{sT1}, s{sT1}, 15")
    a(f"s_lshl_b32 s{sT2}, s{sDS}, 12")
    a(f"s_add_u32 s{sT1}, s{sT1}, s{sT2}")
    a(f"s_add_u32 s{sHO}, s{sT1}, {P_OFF}")
    a.lgkm(0)
    D = 128
    for ks in range(2):
        for et in range(8):
            c = "0" if ks == 0 else vr(D + 4 * et, 4)
            a(f"v_mfma_f32_16x16x32_bf16 {vr(D+4*et,4)}, {vr(108+4*ks,4)}, {ar(192+(et*2+ks)*4,4)}, {c}")
    for jj in range(4):
        for k in range(2):
            et = 2 * jj + k
            a(f"v_cvt_pk_bf16_f32 v{160+4*jj+2*k}, v{D+4*et}, v{D+4*et+1}")
            a(f"v_cvt_pk_bf16_f32 v{160+4*jj+2*k+1}, v{D+4*et+2}, v{D+4*et+3}")
        a.op(f"buffer_store_dwordx4 {vr(160+4*jj,4)}, v7, s[{SWS}:{SWS+3}], s{sHO} offen offset:{jj*256} sc1", "pst")
    a.vm_all()
    a("s_barrier")
    Ls = a.newlabel("Lf3")
    a(f"s_cmp_lg_u32 s{sW}, 0")
    a(f"s_cbranch_scc1 {Ls}")
    a(f"s_lshl_b32 s{sT1}, s{sB}, 4")
    a(f"s_add_u32 s{sT1}, s{sT1}, s{sMT2}")
    a(f"s_lshl_b32 s{sT1}, s{sT1}, 3")
    a(f"s_add_u32 s{sT1}, s{sT1}, s{sDS}")
    a(f"s_lshl_b32 s{sT1}, s{sT1}, 2")
    a(f"s_add_u32 s{sT1}, s{sT1}, {F3_OFF}")
    a("v_mov_b32 v1, 0")
    a("s_mov_b64 exec, 1")
    a(f"buffer_store_dword v{vT}, v1, s[{SWS}:{SWS+3}], s{sT1} offen sc1")
    a("s_mov_b64 exec, -1")
    a.label(Ls)
    a.stamp()


vO = 232
vAO = 236


def wo_setup(a):
    w_pattern(a, vO, 1)
    a(f"s_lshl_b32 s{sT1}, s{sW}, 7")
    a(f"v_add_u32 v{vO}, s{sT1}, v{vO}")
    for i in range(1, 4):
        a(f"v_add_u32 v{vO+i}, {7168*i}, v{vO}")
    a(f"v_lshrrev_b32 v1, 5, v{vL}")
    a(f"v_bfe_u32 v2, v{vL}, 2, 2")
    a("v_lshl_add_u32 v1, v1, 2, v2")
    a("v_lshlrev_b32 v1, 7, v1")
    a(f"v_and_b32 v2, 3, v{vL}")
    a("v_lshl_add_u32 v1, v2, 3, v1")
    a(f"v_add_u32 v1, s{sLB}, v1")
    a(f"v_bfe_u32 v2, v{vL}, 4, 1")
    a(f"v_bfe_u32 v5, v{vL}, 3, 1")
    a("v_lshl_or_b32 v2, v5, 1, v2")
    a(f"v_lshl_add_u32 v{vAO}, v2, 5, v1")
    a("v_xor_b32 v2, 2, v2")
    a(f"v_lshl_add_u32 v{vAO+1}, v2, 5, v1")


def wo_issue(a, n, slotq):
    a(f"s_add_u32 m0, s{sLB}, {slotq*4096}")
    a(f"s_mov_b32 s{sT0}, {n*32768}")
    for i in range(4):
        a.op(f"buffer_load_dwordx4 v{vO+i}, s[{SWO}:{SWO+3}], s{sT0} offen offset:{1024*i} lds", f"o{n}")


def wo_read(a, n, slotq):
    for k in range(2):
        kap = 2 * n + k
        for nt in range(2):
            for rd in range(2):
                a(f"ds_read_b64_tr_b16 {ar(8*kap+4*nt+2*rd,2)}, v{vAO+nt} offset:{slotq*4096 + k*2048 + rd*1024}")


ST, GF, PF, SEL, OACC, JF = 64, 16, 128, 160, 168, 200


def s4(a):
    o = a.opt
    a(f"v_lshlrev_b32 v1, 4, v{vL}")
    a(f"s_mov_b32 s{sHO}, {F1_OFF}")
    chk_txt = f"buffer_load_dwordx4 v[4:7], v1, s[{SWS}:{SWS+3}], s{sHO} offen sc1"
    a.op(chk_txt, "chk")
    nxt = o.nb
    free = [q for q in range(10) if q >= o.nb]
    inflight = [(n, n) for n in range(o.nb)]
    while free and nxt < 16:
        s = free.pop(0)
        wo_issue(a, nxt, s)
        inflight.append((nxt, s))
        nxt += 1
    prev = None
    for _ in range(o.nb):
        n, s = inflight.pop(0)
        wo_read(a, n, s)
        if prev is not None and nxt < 16:
            a.lgkm(8)
            wo_issue(a, nxt, prev)
            inflight.append((nxt, prev))
            nxt += 1
        prev = s
    assert nxt == 16 or o.nb < 6
    a(f"v_bfe_u32 v2, v{vL}, 3, 2")
    a(f"v_and_b32 v3, 7, v{vL}")
    a("v_mov_b32 v8, 0x3f80")
    a("v_mov_b32 v9, 0x3f800000")
    a("v_mov_b32 v10, 0")
    for q in range(2):
        a(f"v_cmp_eq_u32 vcc, {2*q}, v2")
        a(f"v_cndmask_b32 v11, v10, v8, vcc")
        a(f"v_cmp_eq_u32 vcc, {2*q+1}, v2")
        a(f"v_cndmask_b32 v{SEL+q}, v11, v9, vcc")
        a(f"v_mov_b32 v{SEL+q+2}, v{SEL+q}")
    for q in range(4):
        a(f"v_cmp_eq_u32 vcc, {2*q}, v3")
        a(f"v_cndmask_b32 v11, v10, v8, vcc")
        a(f"v_cmp_eq_u32 vcc, {2*q+1}, v3")
        a(f"v_cndmask_b32 v{SEL+4+q}, v11, v9, vcc")
    poll(a, chk_txt, [4, 5, 6, 7], first_tag="chk")
    Ls = a.newlabel("Le")
    a(f"s_or_b32 s{sT1}, s2, s{sW}")
    a(f"s_cmp_lg_u32 s{sT1}, 0")
    a(f"s_cbranch_scc1 {Ls}")
    a("v_mov_b32 v1, 0")
    a(f"s_mov_b32 s{sT1}, {E_OFF}")
    a("s_mov_b64 exec, 1")
    a(f"buffer_store_dword v{vT}, v1, s[{SWS}:{SWS+3}], s{sT1} offen sc1")
    a("s_mov_b64 exec, -1")
    a.label(Ls)
    a(f"v_lshrrev_b32 v1, 5, v{vL}")
    a(f"v_bfe_u32 v2, v{vL}, 4, 1")
    a(f"v_and_b32 v3, 15, v{vL}")
    a("v_lshl_add_u32 v2, v2, 5, v3")
    a(f"s_lshl_b32 s{sT1}, s{sW}, 7")
    a(f"v_add_u32 v2, s{sT1}, v2")
    a("v_lshlrev_b32 v2, 4, v2")
    a("v_lshl_add_u32 v2, v1, 14, v2")
    a(f"s_lshl_b32 s{sT1}, s{sB}, 13")
    a(f"s_add_u32 s{sT1}, s{sT1}, {G_OFF}")
    a(f"s_add_u32 s{sT2}, s{sT1}, 32768")
    for phi in range(4):
        blk, ab = divmod(phi, 2)
        for s in range(2):
            a.op(f"buffer_load_dwordx4 {vr(GF+(phi*2+s)*4,4)}, v2, s[{SWS}:{SWS+3}], s{sT1 if s == 0 else sT2} offen offset:{blk*1024+ab*256} sc1", f"g{phi}")
    a(f"v_and_b32 v4, 7, v{vL}")
    a(f"s_lshl_b32 s{sT1}, s{sB}, 4")
    a(f"s_lshr_b32 s{sT2}, s{sTT4}, 2")
    a(f"s_add_u32 s{sT1}, s{sT1}, s{sT2}")
    a(f"s_lshl_b32 s{sT1}, s{sT1}, 3")
    a(f"v_add_u32 v4, s{sT1}, v4")
    a("v_lshlrev_b32 v4, 2, v4")
    a(f"s_mov_b32 s{sHO}, {F3_OFF}")
    poll_txt = f"buffer_load_dword v5, v4, s[{SWS}:{SWS+3}], s{sHO} offen sc1"
    issued_poll = False
    if nxt == 16:
        a.op(poll_txt, "poll3")
        issued_poll = True
    prev = None
    while inflight:
        n, s = inflight.pop(0)
        a.vm_wait(f"o{n}")
        wo_read(a, n, s)
        if prev is not None and nxt < 16:
            a.lgkm(8)
            wo_issue(a, nxt, prev)
            inflight.append((nxt, prev))
            nxt += 1
        prev = s
        if nxt == 16 and not issued_poll:
            a.op(poll_txt, "poll3")
            issued_poll = True
    for phi in range(4):
        a.vm_wait(f"g{phi}")
        for s in range(2):
            c = "0" if s == 0 else vr(ST + 16 * phi, 16)
            a(f"v_mfma_f32_32x32x16_bf16 {vr(ST+16*phi,16)}, {vr(GF+(phi*2+s)*4,4)}, {vr(SEL+4,4)}, {c}")
    a(f"v_lshrrev_b32 v1, 5, v{vL}")
    a("v_lshlrev_b32 v1, 13, v1")
    a(f"v_and_b32 v2, 31, v{vL}")
    a("v_lshl_add_u32 v1, v2, 4, v1")
    a(f"s_lshl_b32 s{sT1}, s{sW}, 10")
    a(f"v_add_u32 v1, s{sT1}, v1")
    a(f"s_lshl_b32 s{sT1}, s{sB}, 6")
    a(f"s_add_u32 s{sT1}, s{sT1}, s{sTT4}")
    a(f"s_lshl_b32 s{sT1}, s{sT1}, 15")
    a(f"s_add_u32 s{sT1}, s{sT1}, {P_OFF}")
    a(f"s_add_u32 s{sT2}, s{sT1}, 4096")
    a(f"s_add_u32 s{sT3}, s{sT1}, {4*4096}")
    a(f"s_add_u32 s{sT4}, s{sT1}, {5*4096}")
    a(f"v_lshlrev_b32 v7, 4, v{vL}")
    a(f"v_add_u32 v6, s{sLB}, v7")
    a(f"v_add_u32 v8, {2*RING}, v7")
    a(f"v_and_b32 v2, 31, v{vL}")
    a("v_lshlrev_b32 v9, 7, v2")
    a(f"v_lshrrev_b32 v3, 5, v{vL}")
    a("v_lshl_add_u32 v9, v3, 3, v9")
    a(f"s_add_u32 s{sT5}, s{sLB}, 8192")
    a(f"v_add_u32 v9, s{sT5}, v9")
    a("v_and_b32 v12, 7, v2")
    a(f"v_lshrrev_b32 v2, 3, v{vL}")
    a(f"v_and_b32 v3, 7, v{vL}")
    a("v_xor_b32 v10, v2, v3")
    a("v_lshlrev_b32 v10, 4, v10")
    a("v_lshl_add_u32 v10, v2, 7, v10")
    a(f"v_add_u32 v10, s{sT5}, v10")
    a("v_lshlrev_b32 v11, 4, v3")
    a("v_lshl_add_u32 v11, v2, 10, v11")
    a(f"s_lshl_b32 s{sT5}, s{sW}, 7")
    a(f"v_add_u32 v11, s{sT5}, v11")
    a.lgkm(0)
    a.stamp()
    poll(a, poll_txt, [5], first_tag="poll3")
    a.stamp()
    for blk in range(2):
        for s in range(2):
            for j in range(2):
                so = [sT1, sT2, sT3, sT4][2 * s + j]
                a.op(f"buffer_load_dwordx4 {vr(PF+((blk*2+s)*2+j)*4,4)}, v1, s[{SWS}:{SWS+3}], s{so} offen offset:{blk*512} sc1", f"p{blk}{s}")
    for blk in range(2):
        for s in range(2):
            a.vm_wait(f"p{blk}{s}")
            r = PF + (blk * 2 + s) * 8
            a(f"v_swap_b32 v{r+2}, v{r+4}")
            a(f"v_swap_b32 v{r+3}, v{r+5}")
            for ab in range(2):
                phi = 2 * blk + ab
                a(f"v_mfma_f32_32x32x16_bf16 {vr(ST+16*phi,16)}, {vr(r+4*ab,4)}, {vr(SEL,4)}, {vr(ST+16*phi,16)}")
    a.stamp()

    def tanh_ops(phi):
        ops = []
        base = ST + 16 * phi
        for g in range(4):
            xs = [base + 4 * g + r for r in range(4)]
            ops += [f"v_exp_f32 v{x}, v{x}" for x in xs]
            ops += [f"v_add_f32 v{x}, 1.0, v{x}" for x in xs]
            ops += [f"v_rcp_f32 v{x}, v{x}" for x in xs]
            ops += [f"v_fma_f32 v{x}, v{x}, -2.0, 1.0" for x in xs]
            ops += [f"v_cvt_pk_bf16_f32 v{PF+2*g}, v{xs[0]}, v{xs[1]}",
                    f"v_cvt_pk_bf16_f32 v{PF+2*g+1}, v{xs[2]}, v{xs[3]}"]
        return ops

    def publish(phi):
        for sp in range(2):
            a(f"ds_write_b128 v6, {vr(PF+4*sp,4)} offset:{(2*phi+sp)*1024}")
        a.lgkm(0)
        a("s_barrier")
        for wp in range(4):
            for sp in range(2):
                a(f"ds_read_b128 {vr(JF+(wp*2+sp)*4,4)}, v{7 + (wp >> 1)} offset:{(wp & 1)*RING + (2*phi+sp)*1024}")

    def mm(phi):
        blk, ab = divmod(phi, 2)
        ops = []
        for wp in range(4):
            for sp in range(2):
                kap = 8 * wp + 4 * blk + 2 * sp + ab
                for nt in range(2):
                    first = (phi == 0 and wp == 0 and sp == 0)
                    c = "0" if first else vr(OACC + 16 * nt, 16)
                    ops.append((wp * 2 + sp, f"v_mfma_f32_32x32x16_bf16 {vr(OACC+16*nt,16)}, {ar(8*kap+4*nt,4)}, {vr(JF+(wp*2+sp)*4,4)}, {c}"))
        return ops

    for x in tanh_ops(0):
        a(x)
    for phi in range(4):
        publish(phi)
        ms = mm(phi)
        ts = tanh_ops(phi + 1) if phi < 3 else []
        per = (len(ts) + len(ms) - 1) // len(ms) if ts else 0
        waited = -1
        ti = 0
        for (fr, m) in ms:
            for _ in range(per):
                if ti < len(ts):
                    a(ts[ti]); ti += 1
            if fr > waited:
                a.lgkm(7 - fr)
                waited = fr
            a(m)
        while ti < len(ts):
            a(ts[ti]); ti += 1
    a.stamp()
    for nt in range(2):
        for q in range(4):
            r = OACC + 16 * nt + 4 * q
            d = 16 + (nt * 4 + q) * 2
            a(f"v_cvt_pk_bf16_f32 v{d}, v{r}, v{r+1}")
            a(f"v_cvt_pk_bf16_f32 v{d+1}, v{r+2}, v{r+3}")
            a(f"v_xor_b32 v13, {4*nt+q}, v12")
            a("v_lshl_add_u32 v13, v13, 4, v9")
            a(f"ds_write_b64 v13, {vr(d,2)}")
    a.lgkm(0)
    for rd in range(4):
        a(f"ds_read_b128 {vr(32+4*rd,4)}, v10 offset:{rd*1024}")
    a(f"s_lshl_b32 s{sT1}, s{sTT4}, 15")
    a(f"s_lshl_b32 s{sT2}, s{sNH}, 9")
    a(f"s_add_u32 s{sT1}, s{sT1}, s{sT2}")
    for rd in range(4):
        a.lgkm(3 - rd)
        a(f"s_add_u32 s{sT2}, s{sT1}, {rd*8192}")
        a.op(f"buffer_store_dwordx4 {vr(32+4*rd,4)}, v11, s[{SOUT}:{SOUT+3}], s{sT2} offen", "out")
    a.stamp()


def amplify(a):
    if a.opt.amp < 0:
        return
    a("s_waitcnt vmcnt(0) lgkmcnt(0)")
    a.stamp()
    a("s_memrealtime s[100:101]")
    a("s_waitcnt lgkmcnt(0)")
    a("s_sub_u32 s98, s98, s96")
    a(f"s_mul_i32 s98, s98, {a.opt.ampk}")
    a("s_add_u32 s98, s98, s100")
    a.label("Lamp")
    a("s_memrealtime s[100:101]")
    a("s_waitcnt lgkmcnt(0)")
    a("s_sub_u32 s100, s100, s98")
    a("s_cmp_lt_i32 s100, 0")
    a("s_cbranch_scc1 Lamp")


def write_stamps(a):
    if not a.opt.stamps:
        return
    a("s_waitcnt vmcnt(0)")
    a.stamp()
    a(f"s_lshl_b32 s{sT1}, s2, 2")
    a(f"s_add_u32 s{sT1}, s{sT1}, s{sW}")
    a(f"s_lshl_b32 s{sT1}, s{sT1}, 7")
    a(f"s_add_u32 s{sT1}, s{sT1}, {STAMP_OFF}")
    a(f"s_add_u32 s4, s{PWS}, s{sT1}")
    a(f"s_addc_u32 s5, s{PWS+1}, 0")
    a("s_mov_b32 s6, 128")
    a("s_mov_b32 s7, 0x00020000")
    a(f"v_lshlrev_b32 v1, 2, v{vL}")
    a(f"buffer_store_dword v{vSTAMP}, v1, s[4:7], 0 offen")
    a("s_waitcnt vmcnt(0)")


def build(opt):
    a = G(opt)
    a.lines.append(f".globl {NAME}")
    a.lines.append(".p2align 8")
    a.lines.append(f".type {NAME},@function")
    a.lines.append(f"{NAME}:")
    if opt.stamps:
        a(f"v_mov_b32 v{vSTAMP}, 0")
    a.stamp()
    prologue(a)
    qs = QuadStream(a)
    s1(a, qs)
    if opt.stop > 1:
        s2(a, qs)
    if opt.stop > 2:
        s4(a)
    write_stamps(a)
    amplify(a)
    a.label("Lexit")
    a("s_endpgm")
    a.label("Lcode_end")
    lines, added = hazard.fix(a.lines)
    txt = HEADER_COMMENT + f"; @launch grid=(256,1,1) block=(256,1,1) lds=163840\n"
    txt += '.amdgcn_target "amdgcn-amd-amdhsa--gfx950"\n.text\n' + "\n".join(lines) + "\n"
    txt += '.section .rodata,"a"\n.p2align 6\n' + descriptor(NAME, 512, 102, 256)
    return txt, added, a.nstamp


def parse(argv=None):
    ap = argparse.ArgumentParser()
    ap.add_argument("out")
    ap.add_argument("--stamps", type=int, default=0)
    ap.add_argument("--stop", type=int, default=3)
    ap.add_argument("--amp", type=int, default=-1)
    ap.add_argument("--ampk", type=int, default=8)
    ap.add_argument("--na", type=int, default=4)
    ap.add_argument("--nb", type=int, default=8)
    ap.add_argument("--rot1", type=int, default=1)
    ap.add_argument("--rot2", type=int, default=1)
    return ap.parse_args(argv)


if __name__ == "__main__":
    opt = parse()
    txt, added, ns = build(opt)
    open(opt.out, "w").write(txt)
    print(f"wrote {opt.out}: {txt.count(chr(10))} lines, {added} hazard wait states, {ns} stamps")
```

```python
import sys, argparse
from asmlib import Asm, HEADER_COMMENT, descriptor, f32
import hazard

NAME = "standalone__seq2seq_rnn_t_joint__speech_kernel"

GC1 = -2.0 * 1.4426950408889634 * 0.7978845608028654
GC2 = GC1 * 0.044715
TC = 2.0 * 1.4426950408889634

H_OFF, P_OFF, G_OFF, FL_OFF = 0x000000, 0x100000, 0x500000, 0x520000
E_OFF, GF_OFF, F1_OFF, F3_OFF = FL_OFF, FL_OFF + 0x400, FL_OFF + 0x1000, FL_OFF + 0x9000
WS_BYTES = 0x540000
STAMP_OFF = 0x8000000
OOB = 0x40000000
RING = 40960
SPIN = 1 << 15

SX, SW1, SW2, SWF, SWO, SWS, SOUT, SGG, SWG, SC = 4, 8, 12, 16, 20, 24, 28, 32, 36, 40
sW, sXCD, sIDX, sB, sMT1, sNT1, sDS, sMT2, sNH, sTT4, sLB = 44, 45, 46, 47, 48, 49, 50, 51, 52, 53, 54
sROT, sSPIN = 55, 56
sT0, sT1, sT2, sT3, sT4, sT5 = 57, 58, 59, 60, 61, 62
sWI = 63
PX, PW1, PW2, PG, PWF, PWG, PWO, POUT, PDBG, PWS = 64, 66, 68, 70, 72, 74, 76, 78, 80, 82
sC2, sTC, sOOB, sXI, sXJ, sHO = 84, 85, 86, 87, 88, 89
sST = 90
sROT2 = 92
sM0 = 94

vL, vT, vSTAMP, vC1 = 0, 254, 253, 252


class G(Asm):
    def __init__(self, opt):
        super().__init__()
        self.opt = opt
        self.vm = []
        self.nstamp = 0

    def op(self, text, tag):
        self(text)
        self.vm.append(tag)

    def vm_wait(self, tag):
        idx = max(i for i, t in enumerate(self.vm) if t == tag)
        n = len(self.vm) - 1 - idx
        self(f"s_waitcnt vmcnt({min(n, 63)})")

    def vm_all(self):
        self("s_waitcnt vmcnt(0)")

    def lgkm(self, n):
        self(f"s_waitcnt lgkmcnt({n})")

    def stamp(self):
        n = self.nstamp
        self.nstamp += 1
        if self.opt.amp >= 0:
            if n == 0:
                self("s_memrealtime s[96:97]")
            if n == self.opt.amp:
                self("s_memrealtime s[98:99]")
        if not self.opt.stamps:
            return
        self(f"s_memrealtime s[{sST}:{sST+1}]")
        self("s_waitcnt lgkmcnt(0)")
        self(f"v_writelane_b32 v{vSTAMP}, s{sST}, {n}")

    def srd(self, d, ptr, off_sgpr, nbytes):
        if off_sgpr is None:
            self(f"s_mov_b32 s{d}, s{ptr}")
            self(f"s_mov_b32 s{d+1}, s{ptr+1}")
        else:
            self(f"s_add_u32 s{d}, s{ptr}, s{off_sgpr}")
            self(f"s_addc_u32 s{d+1}, s{ptr+1}, 0")
        self(f"s_mov_b32 s{d+2}, {nbytes}")
        self(f"s_mov_b32 s{d+3}, 0x00020000")


def vr(b, n=1):
    return f"v{b}" if n == 1 else f"v[{b}:{b+n-1}]"


def ar(b, n=1):
    return f"a{b}" if n == 1 else f"a[{b}:{b+n-1}]"


def gelu_group(a, xs, t1, t2, scale=None):
    for x, t in zip(xs, t1):
        a(f"v_mul_f32 v{t}, v{x}, v{x}")
    for t in t1:
        a(f"v_fma_f32 v{t}, v{t}, s{sC2}, v{vC1}")
    for x, t in zip(xs, t1):
        a(f"v_mul_f32 v{t}, v{t}, v{x}")
    for t in t1:
        a(f"v_exp_f32 v{t}, v{t}")
    if scale is not None:
        for x in xs:
            a(f"v_mul_f32 v{x}, s{scale}, v{x}")
    for t in t1:
        a(f"v_add_f32 v{t}, 1.0, v{t}")
    for t in t1:
        a(f"v_rcp_f32 v{t}, v{t}")
    for x, t in zip(xs, t1):
        a(f"v_mul_f32 v{x}, v{x}, v{t}")


def w_pattern(a, dst, tmp):
    a(f"v_lshrrev_b32 v{tmp}, 2, v{vL}")
    a(f"v_and_b32 v{tmp}, 4, v{tmp}")
    a(f"v_and_b32 v{dst}, 7, v{vL}")
    a(f"v_xor_b32 v{dst}, v{dst}, v{tmp}")
    a(f"v_lshlrev_b32 v{dst}, 4, v{dst}")
    a(f"v_lshrrev_b32 v{tmp}, 3, v{vL}")
    a(f"v_lshl_add_u32 v{dst}, v{tmp}, 10, v{dst}")


def poll(a, load_text, reg, nlanes, first_tag=None):
    L = a.newlabel("Lpoll")
    Lok = a.newlabel("Lok")
    if first_tag is None:
        a.op(load_text, "poll")
        first_tag = "poll"
    a.vm_wait(first_tag)
    mask = f"0x{(1 << nlanes) - 1:x}" if nlanes < 32 else "-1"

    def compare():
        a(f"v_cmp_ne_u32 vcc, v{vT}, v{reg}")
        a(f"s_and_b32 s{sM0}, vcc_lo, {mask}")
    compare()
    a(f"s_cbranch_scc0 {Lok}")
    a(f"s_mov_b32 s{sSPIN}, {SPIN}")
    a.label(L)
    a(load_text)
    a("s_waitcnt vmcnt(0)")
    compare()
    a(f"s_cbranch_scc0 {Lok}")
    a(f"s_sub_u32 s{sSPIN}, s{sSPIN}, 1")
    a(f"s_cmp_lg_u32 s{sSPIN}, 0")
    a(f"s_cbranch_scc1 {L}")
    a.label(Lok)
    a("s_nop 1")


def prologue(a):
    o = a.opt
    a(f"s_cmp_ge_u32 s2, 256")
    a("s_cbranch_scc1 Lexit")
    a("s_load_dwordx16 s[64:79], s[0:1], 0")
    a("s_load_dwordx4 s[80:83], s[0:1], 64")
    a(f"s_getpc_b64 s[{SC}:{SC+1}]")
    a("v_lshrrev_b32 v1, 6, v0")
    a("v_and_b32 v0, 63, v0")
    a(f"v_readfirstlane_b32 s{sW}, v1")
    a(f"s_and_b32 s{sXCD}, s2, 7")
    a(f"s_lshr_b32 s{sIDX}, s2, 3")
    a(f"s_lshr_b32 s{sB}, s{sXCD}, 2")
    a(f"s_bfe_u32 s{sMT1}, s{sXCD}, 0x10001")
    a(f"s_lshl_b32 s{sMT1}, s{sMT1}, 3")
    a(f"s_lshr_b32 s{sROT}, s{sIDX}, 2")
    a(f"s_add_u32 s{sMT1}, s{sMT1}, s{sROT}")
    a(f"s_and_b32 s{sNT1}, s{sXCD}, 1")
    a(f"s_lshl_b32 s{sNT1}, s{sNT1}, 2")
    a(f"s_and_b32 s{sT0}, s{sIDX}, 3")
    a(f"s_add_u32 s{sNT1}, s{sNT1}, s{sT0}")
    a(f"s_mul_i32 s{sLB}, s{sW}, {RING}")
    a(f"s_lshl_b32 s{sXI}, s{sT0}, 14")
    a(f"s_mov_b32 s{sOOB}, {OOB}")
    if not o.rot1:
        a(f"s_mov_b32 s{sROT}, 0")
        a(f"s_mov_b32 s{sXI}, 0")
    a(f"s_and_b32 s{SC}, s{SC}, 0xffffff00")
    a(f"s_mov_b32 s{SC+2}, Lcode_end-{NAME}")
    a(f"s_mov_b32 s{SC+3}, 0x00020000")
    a(f"s_lshl_b32 s{sT1}, s{sIDX}, 3")
    a(f"s_lshl_b32 s{sT2}, s{sW}, 1")
    a(f"s_add_u32 s{sT1}, s{sT1}, s{sT2}")
    a(f"v_add_u32 v2, s{sT1}, v{vL}")
    a("v_lshlrev_b32 v2, 7, v2")
    a(f"v_mov_b32 v3, s{sOOB}")
    a(f"v_cmp_gt_u32 vcc, 2, v{vL}")
    a("v_cndmask_b32 v2, v3, v2, vcc")
    a(f"v_lshrrev_b32 v6, 4, v{vL}")
    a(f"v_and_b32 v7, 15, v{vL}")
    a("v_lshlrev_b32 v7, 4, v7")
    a(f"s_lshl_b32 s{sT1}, s{sW}, 8")
    a(f"v_add_u32 v7, s{sT1}, v7")
    a("v_lshl_add_u32 v4, v6, 10, v7")
    a("v_add_u32 v4, 1024, v4")
    a(f"s_cmp_lg_u32 s{sMT1}, 0")
    a(f"s_cselect_b32 s{sT2}, 48, 64")
    a(f"v_cmp_le_u32 vcc, s{sT2}, v{vL}")
    a("v_cndmask_b32 v5, v3, v7, vcc")
    w_pattern(a, 8, 6)
    a(f"s_lshl_b32 s{sT1}, s{sW}, 17")
    a(f"v_add_u32 v8, s{sT1}, v8")
    a("v_add_u32 v9, 7168, v8")
    a("v_mov_b32 v10, 0")
    a(f"s_mul_i32 s{sT3}, s{sB}, 1024000")
    a(f"s_lshl_b32 s{sT4}, s{sMT1}, 16")
    a(f"s_add_u32 s{sT3}, s{sT3}, s{sT4}")
    a(f"s_sub_u32 s{SX+2}, {1024000+1024}, s{sT4}")
    a(f"s_mov_b32 s{SX+3}, 0x00020000")
    a(f"s_lshl_b32 s{sT5}, s{sNT1}, 7")
    a(f"s_sub_u32 s{SW1+2}, 1572864, s{sT5}")
    a(f"s_mov_b32 s{SW1+3}, 0x00020000")
    a(f"s_mov_b32 s{SWS+2}, {WS_BYTES}")
    a(f"s_mov_b32 s{SWS+3}, 0x00020000")
    a(f"s_lshl_b32 s{sWI}, s{sROT}, 14")
    a.op(f"buffer_load_dword v11, v2, s[{SC}:{SC+3}], 0 offen", "code")
    a("s_waitcnt lgkmcnt(0)")
    a.stamp()
    a(f"s_add_u32 s{SX}, s{PX}, s{sT3}")
    a(f"s_addc_u32 s{SX+1}, s{PX+1}, 0")
    a(f"s_sub_u32 s{SX}, s{SX}, 1024")
    a(f"s_subb_u32 s{SX+1}, s{SX+1}, 0")
    a(f"s_mov_b32 m0, s{sLB}")
    a(f"s_add_u32 s{SW1}, s{PW1}, s{sT5}")
    a.op(f"buffer_load_dwordx4 v5, s[{SX}:{SX+3}], 0 offen lds", "X")
    a(f"s_addc_u32 s{SW1+1}, s{PW1+1}, 0")
    a(f"s_add_u32 s93, s{sLB}, 1024")
    st = {"cur": sXI, "nxt": sXJ}

    def x_items(n):
        for k in range(n):
            cur, nxt = st["cur"], st["nxt"]
            a(f"s_add_u32 s{nxt}, s{cur}, 4096")
            a(f"s_and_b32 s{nxt}, s{nxt}, 0xffff")
            a(f"s_lshr_b32 s{sT0}, s{nxt}, 8")
            a(f"v_xor_b32 v{6 + (k & 1)}, s{sT0}, v4")
            a(f"s_lshr_b32 s{sT1}, s{cur}, 2")
            a(f"s_add_u32 m0, s93, s{sT1}")
            a("s_nop 0")
            a.op(f"buffer_load_dwordx4 v{6 + (k & 1)}, s[{SX}:{SX+3}], s{cur} offen lds", "X")
            st["cur"], st["nxt"] = nxt, cur
    x_items(o.xlead)
    a(f"s_mov_b32 s{SWS}, s{PWS}")
    a(f"s_mov_b32 s{SWS+1}, s{PWS+1}")
    for j in range(o.wlead):
        w1_issue(a, j)
    late_setup(a)
    touch_issue(a, o.tset0)
    x_items(o.xmid)
    touch_issue(a, o.tset1)
    x_items(16 - o.xlead - o.xmid)
    a(f"s_mov_b32 s{sT1}, {E_OFF}")
    a.op(f"buffer_load_dword v{vT}, v10, s[{SWS}:{SWS+3}], s{sT1} offen sc1", "E")
    for j in range(o.wlead, o.npre):
        w1_issue(a, j)


W1_SLOT = [18 + 2 * j for j in range(11)] + [2 * j for j in range(9)] + [18 + 2 * j for j in range(4)]


def w1_issue(a, j):
    jc, tau = divmod(j, 3)
    if tau == 0 and jc > 0:
        a(f"s_add_u32 s{sWI}, s{sWI}, 16384")
        a(f"s_and_b32 s{sWI}, s{sWI}, 0x1ffff")
    a(f"s_add_u32 m0, s{sLB}, {W1_SLOT[j]*1024}")
    if tau:
        a(f"s_add_u32 s{sT0}, s{sWI}, {tau*524288}")
        so = sT0
    else:
        a("s_nop 0")
        so = sWI
    a.op(f"buffer_load_dwordx4 v8, s[{SW1}:{SW1+3}], s{so} offen lds", f"w1_{j}")
    a.op(f"buffer_load_dwordx4 v9, s[{SW1}:{SW1+3}], s{so} offen offset:1024 lds", f"w1_{j}")


vQ = 232
vQF = 236
vA2 = 240


def quad_setup(a):
    w_pattern(a, vQ, 1)
    a(f"v_xor_b32 v{vQ+1}, 32, v{vQ}")
    a(f"v_add_u32 v{vQ+1}, 7168, v{vQ+1}")
    a(f"v_add_u32 v{vQ+2}, {2*7168}, v{vQ}")
    a(f"v_add_u32 v{vQ+3}, {2*7168}, v{vQ+1}")
    a(f"s_lshl_b32 s{sT0}, s{sW}, 8")
    a(f"s_lshl_b32 s{sT1}, s{sW}, 17")
    for i in range(4):
        a(f"v_add_u32 v{vQF+i}, s{sT0}, v{vQ+i}")
    for i in range(4):
        a(f"v_add_u32 v{vQ+i}, s{sT1}, v{vQ+i}")
    a(f"v_lshrrev_b32 v1, 4, v{vL}")
    a(f"v_bfe_u32 v2, v{vL}, 2, 2")
    a("v_lshlrev_b32 v2, 7, v2")
    a("v_lshl_add_u32 v2, v1, 10, v2")
    a(f"v_and_b32 v3, 3, v{vL}")
    a("v_lshl_add_u32 v2, v3, 3, v2")
    a(f"v_add_u32 v2, s{sLB}, v2")
    a(f"v_bfe_u32 v3, v{vL}, 3, 1")
    a("v_lshlrev_b32 v3, 1, v3")
    a("v_and_b32 v1, 1, v1")
    a("v_or_b32 v3, v3, v1")
    for nt in range(4):
        a(f"v_xor_b32 v1, {nt}, v3")
        a(f"v_lshl_add_u32 v{vA2+nt}, v1, 5, v2")


def quad_issue(a, q, slotq):
    a(f"s_add_u32 m0, s{sLB}, {slotq*4096}")
    if q < 12:
        jc, tau = divmod(q, 3)
        if tau == 0:
            if jc > 0:
                a(f"s_add_u32 s{sWI}, s{sWI}, 32768")
                a(f"s_and_b32 s{sWI}, s{sWI}, 0x1ffff")
            else:
                a(f"s_lshl_b32 s{sWI}, s{sROT2}, 15")
            so = sWI
        else:
            a(f"s_add_u32 s{sT0}, s{sWI}, {tau*524288}")
            so = sT0
        for i in range(4):
            a.op(f"buffer_load_dwordx4 v{vQ+i}, s[{SW2}:{SW2+3}], s{so} offen offset:{1024*i} lds", f"q{q}")
    else:
        half, ks = divmod(q - 12, 2)
        a(f"s_mov_b32 s{sT0}, {ks*32768 + half*128}")
        for i in range(4):
            a.op(f"buffer_load_dwordx4 v{vQF+i}, s[{SWF}:{SWF+3}], s{sT0} offen offset:{1024*i} lds", f"q{q}")


def quad_read(a, q, slotq):
    for nt in range(4):
        if q < 12:
            d = (q * 4 + nt) * 4
        else:
            half, ks = divmod(q - 12, 2)
            d = 192 + ((half * 4 + nt) * 2 + ks) * 4
        a(f"ds_read_b64_tr_b16 {ar(d,2)}, v{vA2+nt} offset:{slotq*4096}")
        a(f"ds_read_b64_tr_b16 {ar(d+2,2)}, v{vA2+nt} offset:{slotq*4096+512}")


class QuadStream:
    def __init__(self, a):
        self.a = a
        self.next = 0
        self.inflight = []

    def issue(self, slotq):
        quad_issue(self.a, self.next, slotq)
        self.inflight.append((self.next, slotq))
        self.next += 1


XF, WB, ACC = 16, 112, 128
vGA, vGB, vGD = 160, 164, 168
GB = 48


vTCH = 247
vJUNK = 172
RED = 16 * 1024


def touch_setup(a):
    a(f"s_lshr_b32 s{sT1}, s{sIDX}, 1")
    a(f"v_mov_b32 v3, s{sOOB}")
    a(f"s_mul_i32 s{sT2}, s{sT1}, 96")
    a(f"s_mul_i32 s{sT3}, s{sW}, 24")
    a(f"s_add_u32 s{sT2}, s{sT2}, s{sT3}")
    a(f"v_add_u32 v1, s{sT2}, v{vL}")
    a("v_lshlrev_b32 v1, 10, v1")
    a(f"v_cmp_gt_u32 vcc, 24, v{vL}")
    a(f"v_cndmask_b32 v{vTCH}, v3, v1, vcc")
    a(f"s_lshl_b32 s{sT2}, s{sT1}, 5")
    a(f"s_lshl_b32 s{sT3}, s{sW}, 3")
    a(f"s_add_u32 s{sT2}, s{sT2}, s{sT3}")
    a(f"v_add_u32 v1, s{sT2}, v{vL}")
    a("v_lshlrev_b32 v1, 7, v1")
    a(f"v_cmp_gt_u32 vcc, 8, v{vL}")
    a(f"v_cndmask_b32 v{vTCH+1}, v3, v1, vcc")
    a(f"s_lshl_b32 s{sT2}, s{sT1}, 7")
    a(f"s_lshl_b32 s{sT3}, s{sW}, 5")
    a(f"s_add_u32 s{sT2}, s{sT2}, s{sT3}")
    a(f"v_add_u32 v1, s{sT2}, v{vL}")
    a("v_lshrrev_b32 v6, 2, v1")
    a("v_lshlrev_b32 v6, 10, v6")
    a("v_and_b32 v1, 3, v1")
    a("v_lshl_add_u32 v1, v1, 7, v6")
    a(f"v_cmp_gt_u32 vcc, 32, v{vL}")
    a(f"v_cndmask_b32 v{vTCH+2}, v3, v1, vcc")
    a(f"s_lshr_b32 s{sT1}, s{sIDX}, 3")
    a(f"s_and_b32 s{sT4}, s{sIDX}, 7")
    a(f"s_lshl_b32 s{sT2}, s{sT1}, 7")
    a(f"s_lshl_b32 s{sT3}, s{sT4}, 4")
    a(f"s_add_u32 s{sT2}, s{sT2}, s{sT3}")
    a(f"s_lshl_b32 s{sT3}, s{sW}, 2")
    a(f"s_add_u32 s{sT2}, s{sT2}, s{sT3}")
    a(f"v_add_u32 v1, s{sT2}, v{vL}")
    a("v_lshlrev_b32 v1, 10, v1")
    a(f"s_lshl_b32 s{sT3}, s{sXCD}, 7")
    a(f"v_add_u32 v1, s{sT3}, v1")
    a(f"v_cmp_gt_u32 vcc, 4, v{vL}")
    a(f"v_cndmask_b32 v{vTCH+3}, v3, v1, vcc")
    a(f"s_lshl_b32 s{sT4}, s{sT4}, 2")
    a(f"s_add_u32 s{sT4}, s{sT4}, s{sW}")
    a(f"s_lshr_b32 s{sT2}, s{sT4}, 1")
    a(f"s_lshl_b32 s{sT2}, s{sT2}, 10")
    a(f"s_and_b32 s{sT4}, s{sT4}, 1")
    a(f"s_lshl_b32 s{sT4}, s{sT4}, 7")
    a(f"s_add_u32 s{sT2}, s{sT2}, s{sT4}")
    a(f"s_lshl_b32 s{sT1}, s{sT1}, 8")
    a(f"s_add_u32 s{sT2}, s{sT2}, s{sT1}")
    a(f"v_mov_b32 v1, s{sT2}")
    a(f"v_cmp_gt_u32 vcc, 1, v{vL}")
    a(f"v_cndmask_b32 v{vTCH+4}, v3, v1, vcc")


def touch_issue(a, which):
    srds = [SW2, SWF, SWO, SWG, SGG]
    for i in which:
        a.op(f"buffer_load_dword v{vJUNK+i}, v{vTCH+i}, s[{srds[i]}:{srds[i]+3}], 0 offen", "touch")


def flag_store(a, off_lines, tag):
    Ls = a.newlabel("Lfl")
    a(f"s_cmp_lg_u32 s{sW}, 0")
    a(f"s_cbranch_scc1 {Ls}")
    for x in off_lines:
        a(x)
    a("v_mov_b32 v1, 0")
    a("s_mov_b64 exec, 1")
    a(f"buffer_store_dword v{vT}, v1, s[{SWS}:{SWS+3}], s{sT1} offen sc1")
    a("s_mov_b64 exec, -1")
    a.label(Ls)


def late_setup(a):
    o = a.opt
    a(f"s_and_b32 s{sDS}, s{sXCD}, 3")
    a(f"s_lshl_b32 s{sDS}, s{sDS}, 1")
    a(f"s_and_b32 s{sNH}, s{sIDX}, 1")
    a(f"s_add_u32 s{sDS}, s{sDS}, s{sNH}")
    a(f"s_lshr_b32 s{sMT2}, s{sIDX}, 1")
    a(f"s_and_b32 s{sTT4}, s{sXCD}, 3")
    a(f"s_lshl_b32 s{sTT4}, s{sTT4}, 4")
    a(f"s_add_u32 s{sTT4}, s{sTT4}, s{sMT2}")
    a(f"s_and_b32 s{sROT2}, s{sMT2}, 3")
    if not o.rot2:
        a(f"s_mov_b32 s{sROT2}, 0")
    a(f"s_lshl_b32 s{sT1}, s{sDS}, 7")
    a.srd(SW2, PW2, sT1, 0)
    a(f"s_sub_u32 s{SW2+2}, 1572864, s{sT1}")
    a(f"s_lshl_b32 s{sT1}, s{sDS}, 16")
    a.srd(SWF, PWF, sT1, 65536)
    a(f"s_lshl_b32 s{sT1}, s{sNH}, 9")
    a.srd(SWO, PWO, sT1, 0)
    a(f"s_sub_u32 s{SWO+2}, 524288, s{sT1}")
    a(f"s_mul_i32 s{sT1}, s{sB}, 2048000")
    a.srd(SOUT, POUT, sT1, 2048000)
    a.srd(SGG, PG, None, 16384)
    a.srd(SWG, PWG, None, 524288)
    a(f"s_mov_b32 s{sC2}, {f32(GC2)}")
    a(f"s_mov_b32 s{sTC}, {f32(TC)}")
    a(f"v_mov_b32 v{vC1}, {f32(GC1)}")
    touch_setup(a)


def s1(a, qs):
    o = a.opt
    a.stamp()
    a(f"v_and_b32 v1, 15, v{vL}")
    a("v_lshlrev_b32 v1, 2, v1")
    a(f"v_bfe_u32 v2, v{vL}, 4, 1")
    a("v_lshl_add_u32 v1, v2, 1, v1")
    a("v_add_u32 v1, 3, v1")
    a(f"v_lshrrev_b32 v2, 5, v{vL}")
    for tau in range(3):
        a(f"v_add_u32 v3, {tau}, v1")
        a("v_bfe_u32 v6, v3, 2, 4")
        a("v_xor_b32 v6, v6, v2")
        a("v_lshlrev_b32 v6, 4, v6")
        a("v_lshl_add_u32 v6, v3, 8, v6")
        a(f"v_add_u32 v{12+tau}, s{sLB}, v6")
    a(f"v_bfe_u32 v1, v{vL}, 2, 2")
    a("v_lshlrev_b32 v1, 7, v1")
    a("v_lshl_add_u32 v1, v2, 10, v1")
    a(f"v_and_b32 v3, 3, v{vL}")
    a("v_lshl_add_u32 v1, v3, 3, v1")
    a(f"v_add_u32 v1, s{sLB}, v1")
    a(f"v_bfe_u32 v3, v{vL}, 4, 1")
    a(f"v_bfe_u32 v6, v{vL}, 3, 1")
    a("v_lshl_or_b32 v3, v6, 1, v3")
    a("v_lshl_add_u32 v4, v3, 5, v1")
    a("v_xor_b32 v3, 2, v3")
    a("v_lshl_add_u32 v5, v3, 5, v1")
    if o.fine == 2:
        a.stamp()
    a.vm_wait("X")
    a.stamp()
    a(f"s_lshl_b32 s{sT1}, s{sROT}, 5")
    for jc in range(8):
        if jc:
            a(f"s_add_u32 s{sT1}, s{sT1}, 32")
            a(f"s_and_b32 s{sT1}, s{sT1}, 0xff")
        for tau in range(3):
            j = 3 * jc + tau
            a(f"v_xor_b32 v{6 + (j & 1)}, s{sT1}, v{12+tau}")
            a(f"ds_read_b128 {vr(XF+4*j,4)}, v{6 + (j & 1)}")
    for j in range(o.npre, 11):
        w1_issue(a, j)
    quad_setup(a)
    a(f"s_lshr_b32 s{sT1}, s{sIDX}, 3")
    a(f"s_and_b32 s{sT2}, s{sIDX}, 7")
    a(f"s_lshl_b32 s{sT3}, s{sXCD}, 3")
    a(f"s_add_u32 s{sT2}, s{sT2}, s{sT3}")
    a(f"s_lshl_b32 s{sT3}, s{sT1}, 7")
    a(f"s_lshl_b32 s{sT4}, s{sW}, 5")
    a(f"s_add_u32 s{sT3}, s{sT3}, s{sT4}")
    a(f"v_and_b32 v1, 31, v{vL}")
    a(f"v_add_u32 v1, s{sT3}, v1")
    a("v_lshlrev_b32 v1, 10, v1")
    a(f"s_lshl_b32 s{sT4}, s{sT2}, 4")
    a(f"v_add_u32 v15, s{sT4}, v1")
    a(f"v_mov_b32 v1, s{sOOB}")
    a(f"v_cmp_gt_u32 vcc, 32, v{vL}")
    a("v_cndmask_b32 v15, v1, v15, vcc")
    a(f"v_and_b32 v1, 15, v{vL}")
    a("v_lshlrev_b32 v1, 10, v1")
    a(f"v_lshrrev_b32 v3, 4, v{vL}")
    a("v_lshl_add_u32 v1, v3, 4, v1")
    a(f"s_lshl_b32 s{sT3}, s{sT3}, 1")
    a(f"v_add_u32 v244, s{sT3}, v1")
    a("v_lshlrev_b32 v1, 7, v3")
    a(f"v_bfe_u32 v3, v{vL}, 2, 2")
    a("v_lshl_add_u32 v1, v3, 4, v1")
    a(f"v_and_b32 v3, 1, v{vL}")
    a("v_lshl_add_u32 v1, v3, 3, v1")
    a(f"s_add_u32 s{sT3}, s{sLB}, {26*1024}")
    a(f"v_add_u32 v245, s{sT3}, v1")
    a(f"s_lshl_b32 s{sT1}, s{sT1}, 14")
    a(f"s_lshl_b32 s{sT2}, s{sT2}, 7")
    a(f"s_add_u32 s{sT1}, s{sT1}, s{sT2}")
    a(f"s_add_u32 s93, s{sT1}, {G_OFF}")
    a(f"v_lshrrev_b32 v1, 5, v{vL}")
    a("v_lshlrev_b32 v1, 13, v1")
    a(f"v_and_b32 v3, 15, v{vL}")
    a("v_lshl_add_u32 v1, v3, 4, v1")
    a(f"v_bfe_u32 v6, v{vL}, 4, 1")
    a("v_lshl_add_u32 v1, v6, 3, v1")
    a(f"s_cmp_eq_u32 s{sW}, 0")
    a(f"s_cselect_b32 s{sT2}, 8, 0")
    a(f"v_cmp_gt_u32 vcc, s{sT2}, v3")
    a(f"v_mov_b32 v6, s{sOOB}")
    a("v_cndmask_b32 v246, v6, v1, vcc")
    a.lgkm(0)
    a.vm_wait("E")
    a(f"v_add_u32 v{vT}, 1, v{vT}")
    a(f"v_or_b32 v{vT}, 0x80000000, v{vT}")

    def mfmas(j):
        for nt in range(2):
            c = "0" if j == 0 else vr(ACC + 16 * nt, 16)
            a(f"v_mfma_f32_32x32x16_bf16 {vr(ACC+16*nt,16)}, {vr(WB + 8*(j & 1) + 4*nt, 4)}, {vr(XF+4*j,4)}, {c}")

    nxt = 11
    for j in range(24):
        a.vm_wait(f"w1_{j}")
        b = WB + 8 * (j & 1)
        so = W1_SLOT[j] * 1024
        if j == o.gj:
            a.vm_wait("G")
            a(f"ds_read_b64_tr_b16 {vr(vGB,2)}, v245")
            a(f"ds_read_b64_tr_b16 {vr(vGB+2,2)}, v245 offset:64")
        for nt in range(2):
            a(f"ds_read_b64_tr_b16 {vr(b+4*nt,2)}, v{4+nt} offset:{so}")
            a(f"ds_read_b64_tr_b16 {vr(b+4*nt+2,2)}, v{4+nt} offset:{so+512}")
        if j > 0:
            a.lgkm(4)
            mfmas(j - 1)
        if j == o.gj + 1:
            a(f"v_mfma_f32_16x16x32_bf16 {vr(vGD,4)}, {vr(vGA,4)}, {vr(vGB,4)}, 0")
        if nxt < 24 and (nxt < 20 or j >= nxt - 19):
            w1_issue(a, nxt)
            nxt += 1
        if j == o.gl:
            g_load(a)
        if j == o.tpos and o.tset:
            assert nxt == 24
            if o.tbar:
                a("s_barrier")
            touch_issue(a, o.tset)
        if o.fine == 1 and j in (0, 5, 10, 15, 19, 23):
            a.stamp()
    assert nxt == 24
    a.lgkm(0)
    mfmas(23)
    a(f"v_lshlrev_b32 v1, 4, v{vL}")
    a(f"s_add_u32 s{sT1}, s{sLB}, {RED}")
    a(f"v_add_u32 v2, s{sT1}, v1")
    a(f"v_lshrrev_b32 v8, 5, v{vL}")
    a(f"s_lshl_b32 s{sT1}, s{sW}, 1")
    a(f"v_add_u32 v8, s{sT1}, v8")
    a(f"v_and_b32 v9, 31, v{vL}")
    a("v_lshlrev_b32 v9, 4, v9")
    a("v_lshl_add_u32 v9, v8, 10, v9")
    a(f"v_add_u32 v9, {RED}, v9")
    a(f"v_add_u32 v10, {2*RING}, v9")
    a(f"v_add_u32 v13, {27*1024}, v1")
    a(f"v_add_u32 v14, {27*1024 + 2*RING}, v1")
    a(f"s_add_u32 s{sT1}, s{sLB}, {27*1024}")
    a(f"v_add_u32 v12, s{sT1}, v1")
    a(f"ds_write_b128 v12, {vr(vGD,4)}")
    for q in range(8):
        a(f"ds_write_b128 v2, {vr(ACC+4*q,4)} offset:{q*1024}")
    a(f"v_bfe_u32 v11, v{vL}, 4, 1")
    a("v_lshlrev_b32 v11, 18, v11")
    a("v_lshl_add_u32 v11, v8, 12, v11")
    a(f"v_and_b32 v1, 15, v{vL}")
    a("v_lshl_add_u32 v11, v1, 4, v11")
    a(f"s_lshl_b32 s{sT1}, s{sB}, 19")
    a(f"s_lshl_b32 s{sT2}, s{sNT1}, 15")
    a(f"s_add_u32 s{sT1}, s{sT1}, s{sT2}")
    a(f"s_lshl_b32 s{sT2}, s{sMT1}, 8")
    a(f"s_add_u32 s{sHO}, s{sT1}, s{sT2}")
    if H_OFF:
        a(f"s_add_u32 s{sHO}, s{sHO}, {H_OFF}")
    a.lgkm(0)
    a("s_barrier")
    a.stamp()
    early = list((7, 8, 9, 0, 1, 2, 3))
    for _ in range(o.ne):
        qs.issue(early.pop(0))
    RB = 16
    for wp in range(4):
        for hh in range(2):
            a(f"ds_read_b128 {vr(RB+(wp*2+hh)*4,4)}, v{9 + (wp >> 1)} offset:{(wp & 1)*RING + hh*512}")
    for wp in range(4):
        a(f"ds_read_b128 {vr(GB+4*wp,4)}, v{13 if wp < 2 else 14} offset:{(wp & 1)*RING}")
    X8 = [64 + c for c in range(8)]
    src = lambda wp, c: RB + (wp * 2 + (c >> 2)) * 4 + (c & 3)
    a.lgkm(8)
    for c in range(8):
        a(f"v_add_f32 v{X8[c]}, v{src(0,c)}, v{src(1,c)}")
    a.lgkm(4)
    for c in range(8):
        a(f"v_add_f32 v{72+c}, v{src(2,c)}, v{src(3,c)}")
    for c in range(8):
        a(f"v_add_f32 v{X8[c]}, v{X8[c]}, v{72+c}")
    gelu_group(a, X8, [72 + c for c in range(8)], None)
    for c in range(4):
        a(f"v_cvt_pk_bf16_f32 v{80+c}, v{X8[2*c]}, v{X8[2*c+1]}")
    a.op(f"buffer_store_dwordx4 {vr(80,4)}, v11, s[{SWS}:{SWS+3}], s{sHO} offen sc1", "hst")
    a.stamp()
    a.lgkm(0)
    for r in range(4):
        a(f"v_add_f32 v{84+r}, v{GB+r}, v{GB+4+r}")
        a(f"v_add_f32 v{88+r}, v{GB+8+r}, v{GB+12+r}")
    for r in range(4):
        a(f"v_add_f32 v{84+r}, v{84+r}, v{88+r}")
    for r in range(4):
        a(f"v_mul_f32 v{84+r}, s{sTC}, v{84+r}")
    a("v_cvt_pk_bf16_f32 v88, v84, v85")
    a("v_cvt_pk_bf16_f32 v89, v86, v87")
    a.op(f"buffer_store_dwordx2 v[88:89], v246, s[{SWS}:{SWS+3}], s93 offen sc1", "gst")
    for _ in range(o.na):
        qs.issue(early.pop(0))
    if o.edr:
        prev = None
        for _ in range(o.ne):
            q, slot = qs.inflight.pop(0)
            a.vm_wait(f"q{q}")
            quad_read(a, q, slot)
        a.s1_prev = slot
    a.vm_wait("gst")
    a("s_barrier")
    flag_store(a, [f"s_lshl_b32 s{sT1}, s{sB}, 4",
                   f"s_add_u32 s{sT1}, s{sT1}, s{sMT1}",
                   f"s_lshl_b32 s{sT1}, s{sT1}, 3",
                   f"s_add_u32 s{sT1}, s{sT1}, s{sNT1}",
                   f"s_lshl_b32 s{sT1}, s{sT1}, 7",
                   f"s_add_u32 s{sT1}, s{sT1}, {F1_OFF}"], "f1")
    a.stamp()


HF, ACC2 = 16, 64


def g_load(a):
    a(f"s_add_u32 m0, s{sLB}, {26*1024}")
    a("s_nop 0")
    a.op(f"buffer_load_dwordx4 v15, s[{SWG}:{SWG+3}], 0 offen lds", "G")
    a.op(f"buffer_load_dwordx4 {vr(vGA,4)}, v244, s[{SGG}:{SGG+3}], 0 offen", "G")


def s2(a, qs):
    o = a.opt
    used = {s for (_, s) in qs.inflight}
    free = [q for q in (7, 8, 9, 0, 1, 2, 3, 4, 5, 6) if q not in used]
    NW2 = 12
    while len(qs.inflight) < o.depth and qs.next < NW2:
        qs.issue(free.pop(0))
    a(f"v_and_b32 v13, 7, v{vL}")
    a(f"v_bfe_u32 v2, v{vL}, 3, 1")
    a(f"s_cmp_eq_u32 s{sMT2}, 0")
    a(f"s_cselect_b32 s{sT1}, 0, 8")
    a(f"v_mul_lo_u32 v2, v2, s{sT1}")
    a("v_sub_u32 v13, v13, v2")
    a(f"s_lshl_b32 s{sT1}, s{sB}, 4")
    a(f"s_add_u32 s{sT1}, s{sT1}, s{sMT2}")
    a(f"s_lshl_b32 s{sT1}, s{sT1}, 3")
    a(f"v_add_u32 v13, s{sT1}, v13")
    a("v_lshlrev_b32 v13, 7, v13")
    a(f"v_mov_b32 v2, s{sOOB}")
    a(f"v_cmp_gt_u32 vcc, 16, v{vL}")
    a("v_cndmask_b32 v13, v2, v13, vcc")
    a(f"v_lshrrev_b32 v12, 2, v{vL}")
    a(f"s_lshl_b32 s{sT1}, s{sB}, 4")
    a(f"s_bfe_u32 s{sT2}, s{sXCD}, 0x10001")
    a(f"s_lshl_b32 s{sT2}, s{sT2}, 3")
    a(f"s_add_u32 s{sT1}, s{sT1}, s{sT2}")
    a(f"v_add_u32 v12, s{sT1}, v12")
    a("v_lshlrev_b32 v12, 3, v12")
    a(f"v_and_b32 v1, 3, v{vL}")
    a("v_add_u32 v12, v12, v1")
    a(f"s_and_b32 s{sT1}, s{sXCD}, 1")
    a(f"s_lshl_b32 s{sT1}, s{sT1}, 2")
    a(f"v_add_u32 v12, s{sT1}, v12")
    a("v_lshlrev_b32 v12, 7, v12")
    a(f"s_or_b32 s{sT1}, s{sIDX}, s{sW}")
    a(f"s_cmp_eq_u32 s{sT1}, 0")
    a(f"s_cselect_b32 s{sT1}, 32, 0")
    a(f"v_cmp_gt_u32 vcc, s{sT1}, v{vL}")
    a("v_cndmask_b32 v12, v2, v12, vcc")
    a(f"s_mov_b32 s{sHO}, {F1_OFF}")
    poll_txt = f"buffer_load_dword v14, v13, s[{SWS}:{SWS+3}], s{sHO} offen sc1"
    lead_txt = f"buffer_load_dword v15, v12, s[{SWS}:{SWS+3}], s{sHO} offen sc1"
    prev = None
    polled = False
    while qs.inflight:
        q, slot = qs.inflight.pop(0)
        a.vm_wait(f"q{q}")
        if o.fine == 3:
            a.stamp()
        quad_read(a, q, slot)
        if prev is not None:
            a.lgkm(8)
            free.append(prev)
        prev = slot
        while len(qs.inflight) < o.depth and qs.next < NW2 and free:
            qs.issue(free.pop(0))
        if qs.next == NW2 and len(qs.inflight) <= o.pollq and not polled:
            a.op(poll_txt, "poll1")
            polled = True
    assert polled
    a(f"v_and_b32 v5, 15, v{vL}")
    a(f"s_lshl_b32 s{sT1}, s{sMT2}, 4")
    a(f"v_add_u32 v5, s{sT1}, v5")
    a(f"v_lshrrev_b32 v6, 4, v{vL}")
    a("v_lshlrev_b32 v6, 12, v6")
    a("v_lshl_add_u32 v3, v5, 4, v6")
    a(f"s_lshl_b32 s{sT1}, s{sW}, 16")
    a(f"v_add_u32 v3, s{sT1}, v3")
    a("v_subrev_u32 v4, 16, v3")
    a("v_cmp_eq_u32 vcc, 0, v5")
    a(f"v_mov_b32 v6, s{sOOB}")
    a("v_cndmask_b32 v4, v4, v6, vcc")
    a.lgkm(0)
    a.stamp()
    poll(a, poll_txt, 14, 16, first_tag="poll1")
    a.stamp()
    a(f"s_lshl_b32 s{sT1}, s{sB}, 19")
    if H_OFF:
        a(f"s_add_u32 s{sT1}, s{sT1}, {H_OFF}")
    a(f"s_lshl_b32 s{sT2}, s{sROT2}, 14")
    for jc in range(4):
        if jc:
            a(f"s_add_u32 s{sT2}, s{sT2}, 16384")
            a(f"s_and_b32 s{sT2}, s{sT2}, 0xffff")
        a(f"s_add_u32 s{sT3}, s{sT1}, s{sT2}")
        a(f"s_add_u32 s{sT4}, s{sT3}, 262144")
        for tau in range(3):
            j = 3 * jc + tau
            va = 4 if tau == 0 else 3
            so = sT3 if tau == 1 else sT4
            a.op(f"buffer_load_dwordx4 {vr(HF+4*j,4)}, v{va}, s[{SWS}:{SWS+3}], s{so} offen sc1", f"h{j}")
    a.op(lead_txt, "lead")
    touch_issue(a, o.tset2)
    wf_at = {2: 0, 5: 1, 8: 2, 11: 3}
    for j in range(12):
        a.vm_wait(f"h{j}")
        for nt in range(4):
            c = "0" if j == 0 else vr(ACC2 + 4 * nt, 4)
            a(f"v_mfma_f32_16x16x32_bf16 {vr(ACC2+4*nt,4)}, {ar((j*4+nt)*4,4)}, {vr(HF+4*j,4)}, {c}")
        if j in wf_at:
            qs.issue(wf_at[j])
    a.stamp()
    Ll = a.newlabel("Llead")
    a(f"s_or_b32 s{sT1}, s{sIDX}, s{sW}")
    a(f"s_cmp_lg_u32 s{sT1}, 0")
    a(f"s_cbranch_scc1 {Ll}")
    vm_keep = list(a.vm)
    poll(a, lead_txt, 15, 32, first_tag="lead")
    a.vm = vm_keep
    a(f"s_lshl_b32 s{sT1}, s{sXCD}, 7")
    a(f"s_add_u32 s{sT1}, s{sT1}, {GF_OFF}")
    a("v_mov_b32 v1, 0")
    a("s_mov_b64 exec, 1")
    a(f"buffer_store_dword v{vT}, v1, s[{SWS}:{SWS+3}], s{sT1} offen sc1")
    a("s_mov_b64 exec, -1")
    a.label(Ll)
    wo_setup(a)
    wo_plan = [4, 5, 7, 6, 0, 1, 2, 3, 8][:o.nb]
    assert o.wo1 <= 3 and o.wo1 + o.wo2 <= 4
    wo_next = [0]

    def wo_go(k):
        for _ in range(k):
            if wo_next[0] < len(wo_plan):
                wo_issue(a, wo_next[0], wo_plan[wo_next[0]])
                wo_next[0] += 1
    a(f"v_lshlrev_b32 v1, 4, v{vL}")
    a(f"s_add_u32 s{sT1}, s{sLB}, 32768")
    a(f"v_add_u32 v2, s{sT1}, v1")
    a(f"s_lshl_b32 s{sT1}, s{sW}, 10")
    a(f"s_add_u32 s{sT1}, s{sT1}, 32768")
    a(f"v_add_u32 v3, s{sT1}, v1")
    a(f"v_add_u32 v4, {2*RING}, v3")
    a(f"v_and_b32 v5, 15, v{vL}")
    a("v_mul_u32_u24 v5, 144, v5")
    a(f"v_lshrrev_b32 v7, 4, v{vL}")
    a("v_lshl_add_u32 v6, v7, 4, v5")
    a("v_add_u32 v6, 36864, v6")
    a("v_lshl_add_u32 v5, v7, 3, v5")
    a(f"s_lshl_b32 s{sT1}, s{sW}, 5")
    a(f"s_add_u32 s{sT1}, s{sT1}, 36864")
    a(f"v_add_u32 v5, s{sT1}, v5")
    for nt in range(4):
        a(f"ds_write_b128 v2, {vr(ACC2+4*nt,4)} offset:{nt*1024}")
    wo_go(o.wo1)
    a.lgkm(0)
    a("s_barrier")
    RB = 80
    for wp in range(4):
        a(f"ds_read_b128 {vr(RB+4*wp,4)}, v{3 + (wp >> 1)} offset:{(wp & 1)*RING}")
    wf = list(qs.inflight)
    qs.inflight = []
    assert [q for (q, _) in wf] == [12, 13, 14, 15]

    def wf_drain(i):
        q, slot = wf[i]
        a.vm_wait(f"q{q}")
        quad_read(a, q, slot)
    wf_drain(0)
    a.lgkm(8)
    for r in range(4):
        a(f"v_add_f32 v{96+r}, v{RB+r}, v{RB+4+r}")
        a(f"v_add_f32 v{100+r}, v{RB+8+r}, v{RB+12+r}")
    wf_drain(1)
    for r in range(4):
        a(f"v_add_f32 v{96+r}, v{96+r}, v{100+r}")
    gelu_group(a, [96 + r for r in range(4)], [100 + r for r in range(4)], None, scale=sTC)
    a("v_cvt_pk_bf16_f32 v104, v96, v97")
    a("v_cvt_pk_bf16_f32 v105, v98, v99")
    a("ds_write_b64 v5, v[104:105]")
    wf_drain(2)
    wo_go(o.wo2)
    a.lgkm(8)
    a("s_barrier")
    a("ds_read_b128 v[108:111], v6")
    a("ds_read_b128 v[112:115], v6 offset:64")
    wf_drain(3)
    a(f"v_lshrrev_b32 v7, 4, v{vL}")
    a("v_lshlrev_b32 v7, 15, v7")
    a(f"v_and_b32 v8, 15, v{vL}")
    a("v_lshl_add_u32 v7, v8, 4, v7")
    a(f"s_lshl_b32 s{sT1}, s{sW}, 10")
    a(f"v_add_u32 v7, s{sT1}, v7")
    a(f"s_lshl_b32 s{sT1}, s{sB}, 6")
    a(f"s_lshl_b32 s{sT2}, s{sMT2}, 2")
    a(f"s_add_u32 s{sT1}, s{sT1}, s{sT2}")
    a(f"s_lshl_b32 s{sT1}, s{sT1}, 15")
    a(f"s_lshl_b32 s{sT2}, s{sDS}, 12")
    a(f"s_add_u32 s{sT1}, s{sT1}, s{sT2}")
    a(f"s_add_u32 s{sHO}, s{sT1}, {P_OFF}")
    D = 128
    for ks in range(2):
        a.lgkm(8 if ks == 0 else 0)
        for et in range(8):
            c = "0" if ks == 0 else vr(D + 4 * et, 4)
            a(f"v_mfma_f32_16x16x32_bf16 {vr(D+4*et,4)}, {vr(108+4*ks,4)}, {ar(192+(et*2+ks)*4,4)}, {c}")
    for jj in range(4):
        for k in range(2):
            et = 2 * jj + k
            a(f"v_cvt_pk_bf16_f32 v{160+4*jj+2*k}, v{D+4*et}, v{D+4*et+1}")
            a(f"v_cvt_pk_bf16_f32 v{160+4*jj+2*k+1}, v{D+4*et+2}, v{D+4*et+3}")
        a.op(f"buffer_store_dwordx4 {vr(160+4*jj,4)}, v7, s[{SWS}:{SWS+3}], s{sHO} offen offset:{jj*256} sc1", "pst")
    a.stamp()
    wo_go(o.wo3)
    a.vm_wait("pst")
    a("s_barrier")
    flag_store(a, [f"s_lshl_b32 s{sT1}, s{sB}, 4",
                   f"s_add_u32 s{sT1}, s{sT1}, s{sMT2}",
                   f"s_lshl_b32 s{sT1}, s{sT1}, 3",
                   f"s_add_u32 s{sT1}, s{sT1}, s{sDS}",
                   f"s_lshl_b32 s{sT1}, s{sT1}, 7",
                   f"s_add_u32 s{sT1}, s{sT1}, {F3_OFF}"], "f3")
    a.stamp()
    a.wo_inflight = [(n, wo_plan[n]) for n in range(wo_next[0])]


vO = 232
vAO = 236


def wo_setup(a):
    w_pattern(a, vO, 1)
    a(f"s_lshl_b32 s{sT1}, s{sW}, 7")
    a(f"v_add_u32 v{vO}, s{sT1}, v{vO}")
    for i in range(1, 4):
        a(f"v_add_u32 v{vO+i}, {7168*i}, v{vO}")
    a(f"v_lshrrev_b32 v1, 5, v{vL}")
    a(f"v_bfe_u32 v2, v{vL}, 2, 2")
    a("v_lshl_add_u32 v1, v1, 2, v2")
    a("v_lshlrev_b32 v1, 7, v1")
    a(f"v_and_b32 v2, 3, v{vL}")
    a("v_lshl_add_u32 v1, v2, 3, v1")
    a(f"v_add_u32 v1, s{sLB}, v1")
    a(f"v_bfe_u32 v2, v{vL}, 4, 1")
    a(f"v_bfe_u32 v5, v{vL}, 3, 1")
    a("v_lshl_or_b32 v2, v5, 1, v2")
    a(f"v_lshl_add_u32 v{vAO}, v2, 5, v1")
    a("v_xor_b32 v2, 2, v2")
    a(f"v_lshl_add_u32 v{vAO+1}, v2, 5, v1")


def wo_issue(a, n, slotq):
    a(f"s_add_u32 m0, s{sLB}, {slotq*4096}")
    a(f"s_mov_b32 s{sT0}, {n*32768}")
    for i in range(4):
        a.op(f"buffer_load_dwordx4 v{vO+i}, s[{SWO}:{SWO+3}], s{sT0} offen offset:{1024*i} lds", f"o{n}")


def wo_read(a, n, slotq):
    for k in range(2):
        kap = 2 * n + k
        for nt in range(2):
            for rd in range(2):
                a(f"ds_read_b64_tr_b16 {ar(8*kap+4*nt+2*rd,2)}, v{vAO+nt} offset:{slotq*4096 + k*2048 + rd*1024}")


ST, GF, PF, SEL, OACC, JF = 64, 16, 128, 160, 168, 200


def s4(a):
    o = a.opt
    a(f"v_lshlrev_b32 v1, 7, v{vL}")
    a(f"v_mov_b32 v2, s{sOOB}")
    a(f"v_cmp_gt_u32 vcc, 8, v{vL}")
    a("v_cndmask_b32 v1, v2, v1, vcc")
    a(f"s_mov_b32 s{sHO}, {GF_OFF}")
    chk_txt = f"buffer_load_dword v4, v1, s[{SWS}:{SWS+3}], s{sHO} offen sc1"
    a.op(chk_txt, "chk")
    inflight = list(a.wo_inflight)
    nxt = len(inflight)
    used = {s for (_, s) in inflight}
    free = [q for q in (4, 5, 7, 6, 0, 1, 2, 3, 8, 9) if q not in used]
    npart1 = nxt
    while free and nxt < 16:
        s = free.pop(0)
        wo_issue(a, nxt, s)
        inflight.append((nxt, s))
        nxt += 1
    prev = None
    for _ in range(min(npart1, o.ndr)):
        n, s = inflight.pop(0)
        a.vm_wait(f"o{n}")
        if o.fine == 4 and n % 2 == 0:
            a.stamp()
        wo_read(a, n, s)
        if prev is not None and nxt < 16:
            a.lgkm(8)
            wo_issue(a, nxt, prev)
            inflight.append((nxt, prev))
            nxt += 1
        prev = s
    carry = prev
    a(f"v_bfe_u32 v2, v{vL}, 3, 2")
    a(f"v_and_b32 v3, 7, v{vL}")
    a("v_mov_b32 v8, 0x3f80")
    a("v_mov_b32 v9, 0x3f800000")
    a("v_mov_b32 v10, 0")
    for q in range(2):
        a(f"v_cmp_eq_u32 vcc, {2*q}, v2")
        a(f"v_cndmask_b32 v11, v10, v8, vcc")
        a(f"v_cmp_eq_u32 vcc, {2*q+1}, v2")
        a(f"v_cndmask_b32 v{SEL+q}, v11, v9, vcc")
        a(f"v_mov_b32 v{SEL+q+2}, v{SEL+q}")
    for q in range(4):
        a(f"v_cmp_eq_u32 vcc, {2*q}, v3")
        a(f"v_cndmask_b32 v11, v10, v8, vcc")
        a(f"v_cmp_eq_u32 vcc, {2*q+1}, v3")
        a(f"v_cndmask_b32 v{SEL+4+q}, v11, v9, vcc")
    if o.fine == 4:
        a.stamp()
    poll(a, chk_txt, 4, 8, first_tag="chk")
    if o.fine == 4:
        a.stamp()
    Ls = a.newlabel("Le")
    a(f"s_or_b32 s{sT1}, s2, s{sW}")
    a(f"s_cmp_lg_u32 s{sT1}, 0")
    a(f"s_cbranch_scc1 {Ls}")
    a("v_mov_b32 v1, 0")
    a(f"s_mov_b32 s{sT1}, {E_OFF}")
    a("s_mov_b64 exec, 1")
    a(f"buffer_store_dword v{vT}, v1, s[{SWS}:{SWS+3}], s{sT1} offen sc1")
    a("s_mov_b64 exec, -1")
    a.label(Ls)
    a(f"v_lshrrev_b32 v1, 5, v{vL}")
    a(f"v_bfe_u32 v2, v{vL}, 4, 1")
    a(f"v_and_b32 v3, 15, v{vL}")
    a("v_lshl_add_u32 v2, v2, 5, v3")
    a(f"s_lshl_b32 s{sT1}, s{sW}, 7")
    a(f"v_add_u32 v2, s{sT1}, v2")
    a("v_lshlrev_b32 v2, 4, v2")
    a("v_lshl_add_u32 v2, v1, 14, v2")
    a(f"s_lshl_b32 s{sT1}, s{sB}, 13")
    a(f"s_add_u32 s{sT1}, s{sT1}, {G_OFF}")
    a(f"s_add_u32 s{sT2}, s{sT1}, 32768")
    for phi in range(4):
        blk, ab = divmod(phi, 2)
        for s in range(2):
            a.op(f"buffer_load_dwordx4 {vr(GF+(phi*2+s)*4,4)}, v2, s[{SWS}:{SWS+3}], s{sT1 if s == 0 else sT2} offen offset:{blk*1024+ab*256} sc1", f"g{phi}")
    a(f"s_lshl_b32 s{sT1}, s{sB}, 4")
    a(f"s_lshr_b32 s{sT2}, s{sTT4}, 2")
    a(f"s_add_u32 s{sT1}, s{sT1}, s{sT2}")
    a(f"s_lshl_b32 s{sT1}, s{sT1}, 3")
    a(f"v_add_u32 v4, s{sT1}, v{vL}")
    a("v_lshlrev_b32 v4, 7, v4")
    a(f"v_mov_b32 v5, s{sOOB}")
    a(f"v_cmp_gt_u32 vcc, 8, v{vL}")
    a("v_cndmask_b32 v4, v5, v4, vcc")
    a(f"s_mov_b32 s{sHO}, {F3_OFF}")
    poll_txt = f"buffer_load_dword v5, v4, s[{SWS}:{SWS+3}], s{sHO} offen sc1"
    issued_poll = False
    if nxt == 16:
        a.op(poll_txt, "poll3")
        issued_poll = True
    prev = carry
    while inflight:
        n, s = inflight.pop(0)
        a.vm_wait(f"o{n}")
        if o.fine == 4 and n % 2 == 0:
            a.stamp()
        wo_read(a, n, s)
        if prev is not None and nxt < 16:
            a.lgkm(8)
            wo_issue(a, nxt, prev)
            inflight.append((nxt, prev))
            nxt += 1
        prev = s
        if nxt == 16 and not issued_poll:
            a.op(poll_txt, "poll3")
            issued_poll = True
    assert nxt == 16
    for phi in range(4):
        a.vm_wait(f"g{phi}")
        for s in range(2):
            c = "0" if s == 0 else vr(ST + 16 * phi, 16)
            a(f"v_mfma_f32_32x32x16_bf16 {vr(ST+16*phi,16)}, {vr(GF+(phi*2+s)*4,4)}, {vr(SEL+4,4)}, {c}")
    a(f"v_lshrrev_b32 v1, 5, v{vL}")
    a("v_lshlrev_b32 v1, 13, v1")
    a(f"v_and_b32 v2, 31, v{vL}")
    a("v_lshl_add_u32 v1, v2, 4, v1")
    a(f"s_lshl_b32 s{sT1}, s{sW}, 10")
    a(f"v_add_u32 v1, s{sT1}, v1")
    a(f"s_lshl_b32 s{sT1}, s{sB}, 6")
    a(f"s_add_u32 s{sT1}, s{sT1}, s{sTT4}")
    a(f"s_lshl_b32 s{sT1}, s{sT1}, 15")
    a(f"s_add_u32 s{sT1}, s{sT1}, {P_OFF}")
    a(f"s_add_u32 s{sT2}, s{sT1}, 4096")
    a(f"s_add_u32 s{sT3}, s{sT1}, {4*4096}")
    a(f"s_add_u32 s{sT4}, s{sT1}, {5*4096}")
    a(f"v_lshlrev_b32 v7, 4, v{vL}")
    a(f"v_add_u32 v6, s{sLB}, v7")
    a(f"v_add_u32 v8, {2*RING}, v7")
    a(f"v_and_b32 v2, 31, v{vL}")
    a("v_lshlrev_b32 v9, 7, v2")
    a(f"v_lshrrev_b32 v3, 5, v{vL}")
    a("v_lshl_add_u32 v9, v3, 3, v9")
    a(f"s_add_u32 s{sT5}, s{sLB}, 8192")
    a(f"v_add_u32 v9, s{sT5}, v9")
    a("v_and_b32 v12, 7, v2")
    a(f"v_lshrrev_b32 v2, 3, v{vL}")
    a(f"v_and_b32 v3, 7, v{vL}")
    a("v_xor_b32 v10, v2, v3")
    a("v_lshlrev_b32 v10, 4, v10")
    a("v_lshl_add_u32 v10, v2, 7, v10")
    a(f"v_add_u32 v10, s{sT5}, v10")
    a("v_lshlrev_b32 v11, 4, v3")
    a("v_lshl_add_u32 v11, v2, 10, v11")
    a(f"s_lshl_b32 s{sT5}, s{sW}, 7")
    a(f"v_add_u32 v11, s{sT5}, v11")
    a.lgkm(0)
    a.stamp()
    poll(a, poll_txt, 5, 8, first_tag="poll3")
    a.stamp()
    for blk in range(2):
        for s in range(2):
            for j in range(2):
                so = [sT1, sT2, sT3, sT4][2 * s + j]
                a.op(f"buffer_load_dwordx4 {vr(PF+((blk*2+s)*2+j)*4,4)}, v1, s[{SWS}:{SWS+3}], s{so} offen offset:{blk*512} sc1", f"p{blk}{s}")
    for blk in range(2):
        for s in range(2):
            a.vm_wait(f"p{blk}{s}")
            r = PF + (blk * 2 + s) * 8
            a(f"v_swap_b32 v{r+2}, v{r+4}")
            a(f"v_swap_b32 v{r+3}, v{r+5}")
            for ab in range(2):
                phi = 2 * blk + ab
                a(f"v_mfma_f32_32x32x16_bf16 {vr(ST+16*phi,16)}, {vr(r+4*ab,4)}, {vr(SEL,4)}, {vr(ST+16*phi,16)}")
    a.stamp()

    def tanh_ops(phi):
        ops = []
        base = ST + 16 * phi
        for g in range(4):
            xs = [base + 4 * g + r for r in range(4)]
            ops += [f"v_exp_f32 v{x}, v{x}" for x in xs]
            ops += [f"v_add_f32 v{x}, 1.0, v{x}" for x in xs]
            ops += [f"v_rcp_f32 v{x}, v{x}" for x in xs]
            ops += [f"v_fma_f32 v{x}, v{x}, -2.0, 1.0" for x in xs]
            ops += [f"v_cvt_pk_bf16_f32 v{PF+2*g}, v{xs[0]}, v{xs[1]}",
                    f"v_cvt_pk_bf16_f32 v{PF+2*g+1}, v{xs[2]}, v{xs[3]}"]
        return ops

    def publish(phi):
        for sp in range(2):
            a(f"ds_write_b128 v6, {vr(PF+4*sp,4)} offset:{(2*phi+sp)*1024}")
        a.lgkm(0)
        a("s_barrier")
        for wp in range(4):
            for sp in range(2):
                a(f"ds_read_b128 {vr(JF+(wp*2+sp)*4,4)}, v{7 + (wp >> 1)} offset:{(wp & 1)*RING + (2*phi+sp)*1024}")

    def mm(phi):
        blk, ab = divmod(phi, 2)
        ops = []
        for wp in range(4):
            for sp in range(2):
                kap = 8 * wp + 4 * blk + 2 * sp + ab
                for nt in range(2):
                    first = (phi == 0 and wp == 0 and sp == 0)
                    c = "0" if first else vr(OACC + 16 * nt, 16)
                    ops.append((wp * 2 + sp, f"v_mfma_f32_32x32x16_bf16 {vr(OACC+16*nt,16)}, {ar(8*kap+4*nt,4)}, {vr(JF+(wp*2+sp)*4,4)}, {c}"))
        return ops

    for x in tanh_ops(0):
        a(x)
    for phi in range(4):
        publish(phi)
        ms = mm(phi)
        ts = tanh_ops(phi + 1) if phi < 3 else []
        per = (len(ts) + len(ms) - 1) // len(ms) if ts else 0
        waited = -1
        ti = 0
        for (fr, m) in ms:
            for _ in range(per):
                if ti < len(ts):
                    a(ts[ti]); ti += 1
            if fr > waited:
                a.lgkm(7 - fr)
                waited = fr
            a(m)
        while ti < len(ts):
            a(ts[ti]); ti += 1
    a.stamp()
    for nt in range(2):
        for q in range(4):
            r = OACC + 16 * nt + 4 * q
            d = 16 + (nt * 4 + q) * 2
            a(f"v_cvt_pk_bf16_f32 v{d}, v{r}, v{r+1}")
            a(f"v_cvt_pk_bf16_f32 v{d+1}, v{r+2}, v{r+3}")
            a(f"v_xor_b32 v13, {4*nt+q}, v12")
            a("v_lshl_add_u32 v13, v13, 4, v9")
            a(f"ds_write_b64 v13, {vr(d,2)}")
    a.lgkm(0)
    for rd in range(4):
        a(f"ds_read_b128 {vr(32+4*rd,4)}, v10 offset:{rd*1024}")
    a(f"s_lshl_b32 s{sT1}, s{sTT4}, 15")
    a(f"s_lshl_b32 s{sT2}, s{sNH}, 9")
    a(f"s_add_u32 s{sT1}, s{sT1}, s{sT2}")
    for rd in range(4):
        a.lgkm(3 - rd)
        a(f"s_add_u32 s{sT2}, s{sT1}, {rd*8192}")
        a.op(f"buffer_store_dwordx4 {vr(32+4*rd,4)}, v11, s[{SOUT}:{SOUT+3}], s{sT2} offen", "out")
    a.stamp()


def amplify(a):
    if a.opt.amp < 0:
        return
    a("s_waitcnt vmcnt(0) lgkmcnt(0)")
    a.stamp()
    a("s_memrealtime s[100:101]")
    a("s_waitcnt lgkmcnt(0)")
    a("s_sub_u32 s98, s98, s96")
    a(f"s_mul_i32 s98, s98, {a.opt.ampk}")
    a("s_add_u32 s98, s98, s100")
    a.label("Lamp")
    a("s_memrealtime s[100:101]")
    a("s_waitcnt lgkmcnt(0)")
    a("s_sub_u32 s100, s100, s98")
    a("s_cmp_lt_i32 s100, 0")
    a("s_cbranch_scc1 Lamp")


def write_stamps(a):
    if not a.opt.stamps:
        return
    a("s_waitcnt vmcnt(0)")
    a.stamp()
    a(f"s_lshl_b32 s{sT1}, s2, 2")
    a(f"s_add_u32 s{sT1}, s{sT1}, s{sW}")
    a(f"s_lshl_b32 s{sT1}, s{sT1}, 7")
    a(f"s_add_u32 s{sT1}, s{sT1}, {STAMP_OFF}")
    a(f"s_add_u32 s4, s{PWS}, s{sT1}")
    a(f"s_addc_u32 s5, s{PWS+1}, 0")
    a("s_mov_b32 s6, 128")
    a("s_mov_b32 s7, 0x00020000")
    a(f"v_lshlrev_b32 v1, 2, v{vL}")
    a(f"buffer_store_dword v{vSTAMP}, v1, s[4:7], 0 offen")
    a("s_waitcnt vmcnt(0)")


def build(opt):
    a = G(opt)
    a.lines.append(f".globl {NAME}")
    a.lines.append(".p2align 8")
    a.lines.append(f".type {NAME},@function")
    a.lines.append(f"{NAME}:")
    if opt.stamps:
        a(f"v_mov_b32 v{vSTAMP}, 0")
    a.stamp()
    prologue(a)
    qs = QuadStream(a)
    s1(a, qs)
    if opt.stop > 1:
        s2(a, qs)
    if opt.stop > 2:
        s4(a)
    write_stamps(a)
    amplify(a)
    a.label("Lexit")
    a("s_endpgm")
    a.label("Lcode_end")
    lines, added = hazard.fix(a.lines)
    txt = HEADER_COMMENT + f"; @launch grid=(256,1,1) block=(256,1,1) lds=163840\n"
    txt += '.amdgcn_target "amdgcn-amd-amdhsa--gfx950"\n.text\n' + "\n".join(lines) + "\n"
    txt += '.section .rodata,"a"\n.p2align 6\n' + descriptor(NAME, 512, 102, 256)
    return txt, added, a.nstamp


def parse(argv=None):
    ap = argparse.ArgumentParser()
    ap.add_argument("out")
    ap.add_argument("--stamps", type=int, default=0)
    ap.add_argument("--stop", type=int, default=3)
    ap.add_argument("--fine", type=int, default=0)
    ap.add_argument("--amp", type=int, default=-1)
    ap.add_argument("--ampk", type=int, default=8)
    ap.add_argument("--na", type=int, default=4)
    ap.add_argument("--nb", type=int, default=8)
    ap.add_argument("--rot1", type=int, default=1)
    ap.add_argument("--rot2", type=int, default=1)
    ap.add_argument("--xlead", type=int, default=4)
    ap.add_argument("--wlead", type=int, default=3)
    ap.add_argument("--npre", type=int, default=7)
    ap.add_argument("--tpos", type=int, default=13)
    ap.add_argument("--tset", type=lambda x: [int(c) for c in x.split(",") if c != ""], default=[0, 1, 2, 3, 4])
    lst = lambda x: [int(c) for c in x.split(",") if c != ""]
    ap.add_argument("--tset0", type=lst, default=[])
    ap.add_argument("--tset1", type=lst, default=[])
    ap.add_argument("--tset2", type=lst, default=[])
    ap.add_argument("--xmid", type=int, default=0)
    ap.add_argument("--tbar", type=int, default=0)
    ap.add_argument("--depth", type=int, default=4)
    ap.add_argument("--gl", type=int, default=12)
    ap.add_argument("--gj", type=int, default=21)
    ap.add_argument("--ne", type=int, default=0)
    ap.add_argument("--edr", type=int, default=0)
    ap.add_argument("--pollq", type=int, default=4)
    ap.add_argument("--wo1", type=int, default=1)
    ap.add_argument("--wo2", type=int, default=1)
    ap.add_argument("--wo3", type=int, default=9)
    ap.add_argument("--ndr", type=int, default=8)
    return ap.parse_args(argv)


if __name__ == "__main__":
    opt = parse()
    txt, added, ns = build(opt)
    open(opt.out, "w").write(txt)
    print(f"wrote {opt.out}: {txt.count(chr(10))} lines, {added} hazard wait states, {ns} stamps")
```
